```python
import torch

def _softmax(x, axis=-1):
    return torch.softmax(x, dim=axis)
def _gelu(x):
    return torch.nn.functional.gelu(x, approximate="tanh")
def _silu(x):
    return torch.nn.functional.silu(x)
def _sigmoid(x):
    return torch.sigmoid(x)
def _layernorm(x, axis=-1, eps=1e-5):
    m = x.mean(dim=axis, keepdim=True)
    v = x.var(dim=axis, keepdim=True, unbiased=False)
    return (x - m) / torch.sqrt(v + eps)
def _scatter_add(tgt, idx, src, axis=0):
    return tgt.clone().index_add_(axis, idx, src)
def _segment_sum(src, seg, n):
    out = torch.zeros((n,) + src.shape[1:], dtype=src.dtype)
    return out.index_add_(0, seg, src)
def _pad(x, pw):
    flat = tuple(v for pair in reversed(pw) for v in pair)
    return torch.nn.functional.pad(x, flat)

kernel_name = 'parallel_sum__grouped_kv_mqa__glu_gated_geglu__prompt'

def setup_inputs():

    _w = (lambda a: (lambda t: t.to(torch.bfloat16) if t.is_floating_point() else t)(torch.as_tensor(a)))
    def _A_setup():
        B, S, D, H = 1, 2048, 448, 16
        Dh = D // H
        return {
            "x": _w((lambda *s: torch.randn(*s, dtype=torch.bfloat16) * 0.05)(B, S, D)),
            "wq": _w((lambda *s: torch.randn(*s, dtype=torch.bfloat16) * 0.05)(D, H * Dh)),
            "wk": _w((lambda *s: torch.randn(*s, dtype=torch.bfloat16) * 0.05)(D, Dh)),
            "wv": _w((lambda *s: torch.randn(*s, dtype=torch.bfloat16) * 0.05)(D, Dh)),
            "wo": _w((lambda *s: torch.randn(*s, dtype=torch.bfloat16) * 0.05)(H * Dh, D)),
        }
    _A_in = _A_setup()

    def _B_setup():
        B, S, Dm, Df = 1, 2048, 448, 1792
        return {
            "x": _w((lambda *s: torch.randn(*s, dtype=torch.bfloat16) * 0.05)(B, S, Dm)),
            "w_gate": _w((lambda *s: torch.randn(*s, dtype=torch.bfloat16) * 0.4)(Dm, Df) * (Dm ** -0.5)),
            "w_up": _w((lambda *s: torch.randn(*s, dtype=torch.bfloat16) * 0.4)(Dm, Df) * (Dm ** -0.5)),
            "w_down": _w((lambda *s: torch.randn(*s, dtype=torch.bfloat16) * 0.4)(Df, Dm) * (Df ** -0.5)),
        }
    _B_in = _B_setup()

    return {
        "A_x": _A_in["x"],
        "A_wq": _A_in["wq"],
        "A_wk": _A_in["wk"],
        "A_wv": _A_in["wv"],
        "A_wo": _A_in["wo"],
        "B_x": _B_in["x"],
        "B_w_gate": _B_in["w_gate"],
        "B_w_up": _B_in["w_up"],
        "B_w_down": _B_in["w_down"],
    }

def reference(A_x, A_wq, A_wk, A_wv, A_wo, B_x, B_w_gate, B_w_up, B_w_down):
    def _A_ref(x, wq, wk, wv, wo):
        B, S, D = x.shape
        H = 16
        Dh = D // H
        q = (lambda x, *d: x.permute(*d))((x @ wq).reshape(B, S, H, Dh), 0, 2, 1, 3)
        k = x @ wk
        v = x @ wv
        scores = torch.einsum("bhqd,bkd->bhqk", q, k) * (Dh ** -0.5)
        p = _softmax(scores, axis=-1)
        o = torch.einsum("bhqk,bkd->bhqd", p, v)
        return (lambda x, *d: x.permute(*d))(o, 0, 2, 1, 3).reshape(B, S, H * Dh) @ wo

    def _B_ref(x, w_gate, w_up, w_down):
        g = torch.einsum("bsd,df->bsf", x, w_gate)
        u = torch.einsum("bsd,df->bsf", x, w_up)
        h = _gelu(g) * u
        return torch.einsum("bsf,fd->bsd", h, w_down)

    x = A_x
    xn = _layernorm(x, axis=-1)
    return x + _A_ref(xn, A_wq, A_wk, A_wv, A_wo) + _B_ref(xn, B_w_gate, B_w_up, B_w_down)
```

```python
import re

class Asm:
    def __init__(self):
        self.lines = []
        self.lg = []
        self.vm = []
        self.uid = 0
    def __call__(self, s):
        for ln in s.strip("\n").split("\n"):
            ln = ln.strip()
            if ln:
                self.lines.append(ln if ln.endswith(":") else "    " + ln)
    def label(self, name):
        self.lines.append(name + ":")
    def newlabel(self, p="L"):
        self.uid += 1
        return f"{p}_{self.uid}"
    def lds(self, s, tag=None):
        self(s); self.lg.append(tag)
    def vmem(self, s, tag=None):
        self(s); self.vm.append(tag)
    def _need(self, q, tags):
        idx = -1
        for i, t in enumerate(q):
            if t in tags: idx = i
        if idx < 0: return None
        n = len(q) - 1 - idx
        del q[:idx + 1]
        return n
    def need_lds(self, *tags):
        n = self._need(self.lg, tags)
        if n is not None:
            assert n <= 15, n
            self(f"s_waitcnt lgkmcnt({n})")
    def need_vm(self, *tags):
        n = self._need(self.vm, tags)
        if n is not None:
            self(f"s_waitcnt vmcnt({min(n, 63)})")
    def drain_lds(self):
        if self.lg:
            self("s_waitcnt lgkmcnt(0)"); self.lg = []
    def drain_vm(self):
        self("s_waitcnt vmcnt(0)"); self.vm = []
    def reset(self):
        self.lg = []; self.vm = []
    def text(self):
        return "\n".join(self.lines) + "\n"

def vr(a, n=1):
    return f"v{a}" if n == 1 else f"v[{a}:{a+n-1}]"
def sr(a, n=1):
    return f"s{a}" if n == 1 else f"s[{a}:{a+n-1}]"

_REG = re.compile(r"^(-|abs\()?([vsa])(?:(\d+)|\[(\d+):(\d+)\])\)?$")
def regs(tok):
    tok = tok.strip()
    if tok in ("vcc", "exec", "m0", "vcc_lo", "vcc_hi"):
        return {tok[:4] if tok.startswith("exec") else tok[:3] if tok.startswith("vcc") else tok}
    m = _REG.match(tok)
    if not m: return set()
    k = m.group(2)
    if m.group(3) is not None: return {k + m.group(3)}
    return {k + str(i) for i in range(int(m.group(4)), int(m.group(5)) + 1)}

TRANS = ("v_exp_", "v_log_", "v_rcp_", "v_rsq_", "v_sqrt_", "v_sin_", "v_cos_")
class I:
    pass
def parse(line):
    s = line.split(";")[0].strip()
    if not s or s.endswith(":") or s.startswith("."): return None
    parts = s.split(None, 1)
    op = parts[0]
    rest = parts[1] if len(parts) > 1 else ""
    ops, depth, cur = [], 0, ""
    for ch in rest:
        if ch in "[(": depth += 1
        if ch in "])": depth -= 1
        if ch == "," and depth == 0:
            ops.append(cur.strip()); cur = ""
        else: cur += ch
    if cur.strip(): ops.append(cur.strip())
    mods = ""
    if ops:
        p = ops[-1].split(None, 1)
        if len(p) > 1 and not ops[-1].startswith("vmcnt") and not ops[-1].startswith("lgkm"):
            ops[-1], mods = p[0], p[1]
    i = I(); i.op = op; i.ops = ops; i.mods = mods; i.text = s
    i.mfma = op.startswith("v_mfma") or op.startswith("v_smfmac")
    i.valu = op.startswith("v_") and not i.mfma
    i.trans = op.startswith(TRANS)
    i.vmem = op.startswith(("buffer_", "global_"))
    i.ds = op.startswith("ds_")
    i.salu = op.startswith("s_")
    i.w, i.r = set(), set()
    R = [regs(o) for o in ops]
    if i.mfma:
        i.w = R[0]; i.a = R[1]; i.b = R[2]
        if op.startswith("v_smfmac"):
            i.c = R[0]; i.idx = R[3]; i.r = R[0] | R[1] | R[2] | R[3]
        else:
            i.c = R[3]; i.idx = set(); i.r = R[1] | R[2] | R[3]
        i.passes = 4 if "16x16" in op else 8
    elif i.valu:
        if op.startswith("v_cmp"):
            i.w = R[0]; i.r = set().union(*R[1:])
        elif op.startswith("v_permlane32_swap") or op.startswith("v_permlane16_swap"):
            i.w = R[0] | R[1]; i.r = R[0] | R[1]
        elif op.startswith(("v_add_co", "v_sub_co", "v_addc_co", "v_subb_co")):
            i.w = R[0] | R[1]; i.r = set().union(*R[2:])
        else:
            i.w = R[0]; i.r = set().union(*R[1:]) if len(R) > 1 else set()
            if op.startswith(("v_fmac", "v_dot2c")): i.r |= R[0]
            if op.startswith("v_cndmask") and len(ops) == 3: i.r |= {"vcc"}
    elif i.vmem:
        lds = "lds" in mods.split() or "_lds_" in op
        if "store" in op or ("atomic" in op):
            i.r = set().union(*R); i.sdata = R[0] if op.startswith("buffer_") else R[1]
            i.wide = "x4" in op or "x3" in op
        elif lds:
            i.r = set().union(*R) | {"m0"}
        else:
            i.w = R[0]; i.r = set().union(*R[1:])
        i.islds = lds
    elif i.ds:
        if "write" in op: i.r = set().union(*R)
        else: i.w = R[0]; i.r = set().union(*R[1:])
    elif i.salu:
        if op in ("s_nop", "s_waitcnt", "s_barrier", "s_sleep", "s_setprio", "s_endpgm") or op.startswith(("s_cbranch", "s_branch", "s_cmp")):
            i.r = set().union(*R) if R else set()
        else:
            i.w = R[0] if R else set(); i.r = set().union(*R[1:]) if len(R) > 1 else set()
    i.states = (int(ops[0], 0) + 1) if op == "s_nop" else 1
    return i

def check_hazards(lines, name=""):
    ins = [x for x in (parse(l) for l in lines) if x]
    probs = []
    for n, c in enumerate(ins):
        dist = 0
        for m in range(n - 1, max(-1, n - 24), -1):
            p = ins[m]
            need = 0; why = ""
            vw = {x for x in p.w if x[0] in "va" and x not in ("vcc",)}
            sw = {x for x in p.w if x[0] == "s" or x in ("vcc",)}
            if p.valu:
                if c.mfma and vw & c.r: need, why = 2, "valu->mfma"
                if c.op.startswith("v_permlane") and vw & c.r: need, why = max(need, 2), "valu->permlane"
                if c.op.startswith(("v_readfirstlane", "v_readlane")) and vw & c.r: need, why = max(need, 1), "valu->readlane"
                if p.trans and c.valu and not c.trans and vw & c.r: need, why = max(need, 1), "trans->valu"
                if p.trans and (c.vmem or c.ds) and vw & c.r: need, why = max(need, 1), "trans->mem"
                if "dpp" in c.op and vw & c.r: need, why = max(need, 2), "valu->dpp"
                if sw and c.vmem and sw & c.r: need, why = max(need, 5), "valu sgpr->vmem"
                if sw and c.valu and sw & c.r: need, why = max(need, 2), "valu sgpr->valu"
                if p.op.startswith("v_dot") and vw & (c.r | c.w):
                    same_c = c.op == p.op and not (vw & (regs(c.ops[1]) | regs(c.ops[2])))
                    if not same_c: need, why = max(need, 3), "dot->use"
                if "exec" in p.w and c.mfma: need, why = max(need, 4), "exec->mfma"
            if p.mfma:
                big = {4: 8, 8: 12}[p.passes]
                if c.mfma:
                    if p.w & (c.a | c.b | c.idx): need, why = big, "mfma->mfma AB"
                    elif p.w & c.c and not (p.w == c.c and p.passes == c.passes): need, why = big - 2, "mfma->mfma C partial"
                    elif p.w & c.w and not (p.w & c.c): need, why = 0, ""
                elif (c.valu or c.vmem or c.ds) and p.w & (c.r | c.w): need, why = big, "mfma->valu/mem"
                if c.valu and p.c & c.w: need, why = max(need, {4: 3, 8: 7}[p.passes]), "mfma srcC WAR"
            if p.vmem and getattr(p, "wide", False) and (c.valu or c.ds or c.vmem or c.mfma) and p.sdata & c.w:
                need, why = max(need, 2), "wide store WAR"
            if p.salu and "m0" in p.w and c.vmem and getattr(c, "islds", False): need, why = max(need, 1), "m0->dma"
            if need > dist:
                probs.append(f"{name}: {why}: need {need} have {dist}: [{p.text}] -> [{c.text}]")
            dist += p.states
            if dist >= 20: break
    return probs
```

```python
import sys, struct, math
from asmlib import Asm, vr, sr, check_hazards, parse

NAME = "parallel_sum__grouped_kv_mqa__glu_gated_geglu__prompt"
WS_KV, WS_H, WS_O, WS_FLG, WS_DBG, WS_SIZE = 0, 0x100000, 0x800000, 0xA00000, 0xB00000, 0x1000000
RING = 98304
QREG = 90112
RREG = 89600
GW = 22528
NWS = 11

def f2u(x): return struct.unpack("<I", struct.pack("<f", x))[0]
def hx(x): return hex(f2u(x))

SX, SWQ, SW1, SWS, SWD, SWO, SOUT, SDBG = 8, 12, 16, 20, 24, 28, 32, 36
R_, C_, WV, W4 = 40, 41, 42, 43

DEF = dict(mapping="B", LA=3, bud=4, stamps=False, mimic=True, spin=200000, opoll=20, npre=20, force_slow=False,
           barA=10, barB=8, codepf=True)

class Gen:
    def __init__(self, **kw):
        self.o = dict(DEF); self.o.update(kw)
        self.a = Asm()
        self.nstamp = 0

    def stamp(self, k):
        if not self.o["stamps"]: return
        a = self.a
        a(f"s_memtime s[4:5]")
        a("s_waitcnt lgkmcnt(0)"); a.lg = []
        a(f"s_sub_u32 s4, s4, s98")
        a(f"v_writelane_b32 v254, s4, {k}") if False else None
        a(f"s_mov_b32 s{self.stampreg(k)}, s4")
    def stampreg(self, k):
        return 64 + k
    def dump_stamps(self, tmpv):
        if not self.o["stamps"]: return
        a = self.a
        a("s_memrealtime s[4:5]")
        a("s_waitcnt lgkmcnt(0)")
        a("s_mov_b32 s78, s4")
        a("s_mov_b32 s79, s99")
        a(f"s_lshl_b32 s6, s2, 3\ns_add_u32 s6, s6, s{WV}\ns_lshl_b32 s6, s6, 6\ns_add_u32 s6, s6, {WS_DBG}")
        a(f"v_mov_b32 v{tmpv}, 0")
        for k in range(16):
            a(f"v_mov_b32 v{tmpv+1}, s{64+k}")
            a(f"buffer_store_dword v{tmpv+1}, v{tmpv}, {sr(SWS,4)}, s6 offen offset:{4*k}")
        a("s_waitcnt vmcnt(0)")

    def poll(self, srd, soff, voffreg, tmp, cmpval, mask_s):
        a = self.a
        L = a.newlabel("L_poll"); D = a.newlabel("L_polld")
        a(f"s_mov_b32 s46, {self.o['spin']}")
        a.label(L)
        a(f"buffer_load_dword v{tmp}, v{voffreg}, {sr(srd,4)}, {soff} offen sc1")
        a("s_waitcnt vmcnt(0)")
        a(f"v_cmp_eq_u32 vcc, {cmpval}, v{tmp}")
        a("s_nop 1")
        a(f"s_and_b64 s[44:45], vcc, {sr(mask_s,2)}")
        a(f"s_cmp_eq_u64 s[44:45], {sr(mask_s,2)}")
        a(f"s_cbranch_scc1 {D}")
        a("s_sleep 2")
        a("s_sub_u32 s46, s46, 1")
        a("s_cmp_lg_u32 s46, 0")
        a(f"s_cbranch_scc1 {L}")
        a.label(D)
        a.vm = []

    def prologue(self):
        a, o = self.a, self.o
        a("s_cmp_ge_u32 s2, 256\ns_cbranch_scc1 L_end")
        if o["stamps"]:
            a("s_memtime s[98:99]\ns_memrealtime s[96:97]")
        a("s_load_dwordx16 s[64:79], s[0:1], 0\ns_load_dwordx8 s[80:87], s[0:1], 64")
        a("v_lshrrev_b32 v1, 6, v0\nv_and_b32 v255, 63, v0")
        a(f"s_and_b32 s44, s2, 7\ns_lshr_b32 s45, s2, 3")
        a(f"v_readfirstlane_b32 s{WV}, v1")
        m = o["mapping"]
        nr, nc = {"A": (2, 16), "B": (4, 8), "C": (8, 4)}[m]
        lc = int(math.log2(nc)); lx = int(math.log2(16 // nc))
        a(f"s_lshr_b32 s{R_}, s44, {lx}\ns_mul_i32 s{R_}, s{R_}, {nr}\ns_lshr_b32 s46, s45, {lc}\ns_add_u32 s{R_}, s{R_}, s46")
        a(f"s_and_b32 s{C_}, s44, {(1 << lx) - 1}\ns_lshl_b32 s{C_}, s{C_}, {lc}\ns_and_b32 s46, s45, {nc-1}\ns_add_u32 s{C_}, s{C_}, s46")
        a(f"s_and_b32 s{W4}, s{WV}, 3")
        a("s_waitcnt lgkmcnt(0)")
        if o["stamps"]:
            a("s_mov_b32 s99, s96")
        def srd(d, p, n):
            a(f"s_mov_b32 s{d}, s{p}\ns_mov_b32 s{d+1}, s{p+1}\ns_mov_b32 s{d+2}, {n}\ns_mov_b32 s{d+3}, 0x20000")
        srd(SX, 64, 1835008); srd(SWQ, 66, 401408); srd(SWS, 86, WS_SIZE)
        srd(SWD, 80, 1605632); srd(SWO, 72, 401408); srd(SOUT, 82, 1835008); srd(SDBG, 84, 256)
        a(f"s_and_b32 s44, s{W4}, 1\ns_cmp_eq_u32 s44, 1")
        a("s_cselect_b32 s46, s78, s76\ns_cselect_b32 s47, s79, s77")
        a(f"s_cmp_eq_u32 s{C_}, 15")
        a("s_cselect_b32 s48, s70, s68\ns_cselect_b32 s49, s71, s69")
        a(f"s_cmp_ge_u32 s{C_}, 14")
        a(f"s_cselect_b32 s{SW1}, s48, s46\ns_cselect_b32 s{SW1+1}, s49, s47")
        a(f"s_cselect_b32 s{SW1+2}, 25088, s{SWD+2}\ns_mov_b32 s{SW1+3}, 0x20000")
        if o["stamps"]:
            for k in range(16): a(f"s_mov_b32 s{64+k}, 0")
        a(f"s_cmp_ge_u32 s{WV}, 4\ns_cbranch_scc1 L_B")

    def a_p0(self):
        a, o = self.a, self.o
        L = 255
        T = 112
        vE, vO, aX, S0, S1, Q0, Q1, t0, t1, t2 = T, T+1, T+2, T+6, T+7, T+8, T+9, T+10, T+11, T+12
        a(f"""
        v_lshrrev_b32 v{t0}, 3, v{L}
        v_mul_u32_u24 v{t0}, 896, v{t0}
        v_and_b32 v{t1}, 7, v{L}
        v_lshrrev_b32 v{t2}, 4, v{L}
        v_xor_b32 v{t1}, v{t1}, v{t2}
        v_lshl_add_u32 v{vE}, v{t1}, 4, v{t0}
        v_xor_b32 v{t1}, 4, v{t1}
        v_lshl_add_u32 v{vO}, v{t1}, 4, v{t0}
        s_lshl_b32 s44, s{R_}, 2
        s_add_u32 s44, s44, s{W4}
        s_mul_i32 s44, s44, {32*896}
        s_mul_i32 s45, s{W4}, 28672
        """)
        for n in range(28):
            pp, g = n // 4, n % 4
            a(f"s_add_u32 m0, s45, {pp*4096 + g*1024}")
            a(f"s_add_u32 s46, s44, {g*7168 + pp*128}")
            a.vmem(f"buffer_load_dwordx4 v{vE if g % 2 == 0 else vO}, {sr(SX,4)}, s46 offen lds", ("x", pp))
        a("s_barrier")
        self.stamp(0)
        a(f"""
        v_and_b32 v{t0}, 31, v{L}
        v_lshrrev_b32 v{t1}, 5, v{L}
        v_bfe_u32 v{t2}, v{L}, 1, 3
        v_xor_b32 v{t1}, v{t1}, v{t2}
        v_lshlrev_b32 v{t1}, 4, v{t1}
        v_lshrrev_b32 v{t2}, 3, v{t0}
        v_lshl_add_u32 v{t1}, v{t2}, 10, v{t1}
        v_and_b32 v{t2}, 7, v{t0}
        v_lshl_add_u32 v{t1}, v{t2}, 7, v{t1}
        v_add_u32 v{aX}, s45, v{t1}
        v_xor_b32 v{aX+1}, 32, v{aX}
        v_xor_b32 v{aX+2}, 64, v{aX}
        v_xor_b32 v{aX+3}, 0x60, v{aX}
        v_mov_b32 v{S0}, 0
        v_mov_b32 v{S1}, 0
        v_mov_b32 v{Q0}, 0
        v_mov_b32 v{Q1}, 0
        s_mov_b32 s47, 0x3f803f80
        """)
        self.a_addr_regs()
        def stats(pp):
            for i in range(16):
                x = 16 * pp + i
                a(f"v_dot2_f32_bf16 v{S0 + i % 2}, v{x}, s47, v{S0 + i % 2}")
                a(f"v_dot2_f32_bf16 v{Q0 + i % 2}, v{x}, v{x}, v{Q0 + i % 2}")
        for pp in range(7):
            a.need_vm(("x", pp))
            for i in range(4):
                a.lds(f"ds_read_b128 {vr(16*pp + 4*i, 4)}, v{aX+i} offset:{pp*4096}", ("xr", pp))
            if pp > 0:
                a.need_lds(("xr", pp - 1)); stats(pp - 1)
        a.need_lds(("xr", 6)); stats(6)
        self.stamp(1)
        M, C1, C3, IR2, QS = 246, 247, 248, 249, 250
        a(f"""
        v_add_f32 v{S0}, v{S0}, v{S1}
        v_add_f32 v{Q0}, v{Q0}, v{Q1}
        v_mov_b32 v{S1}, v{S0}
        v_mov_b32 v{Q1}, v{Q0}
        s_nop 1
        v_permlane32_swap_b32 v{S0}, v{S1}
        v_permlane32_swap_b32 v{Q0}, v{Q1}
        s_nop 1
        v_add_f32 v{S0}, v{S0}, v{S1}
        v_add_f32 v{Q0}, v{Q0}, v{Q1}
        v_mul_f32 v{M}, {hx(1/448)}, v{S0}
        v_mul_f32 v{Q0}, {hx(1/448)}, v{Q0}
        v_fma_f32 v{Q0}, -v{M}, v{M}, v{Q0}
        v_max_f32 v{Q0}, 0, v{Q0}
        """)
        if o["mimic"]:
            def rnd(r):
                a(f"v_cvt_pk_bf16_f32 v{r}, v{r}, v{r}\nv_and_b32 v{r}, 0xffff0000, v{r}")
            rnd(M); rnd(Q0)
            a(f"v_add_f32 v{Q0}, {hx(1e-5)}, v{Q0}"); rnd(Q0)
            a(f"v_sqrt_f32 v{Q0}, v{Q0}\ns_nop 0"); rnd(Q0)
            a(f"v_rcp_f32 v{S0}, v{Q0}\nv_mul_f32 v{IR2}, v{Q0}, v{Q0}")
        else:
            a(f"v_add_f32 v{IR2}, {hx(1e-5)}, v{Q0}\nv_rsq_f32 v{S0}, v{IR2}\ns_nop 0")
        K = 2 * math.log2(math.e) * math.sqrt(2 / math.pi)
        a(f"""
        v_mul_f32 v{QS}, {hx(28 ** -0.5 * math.log2(math.e))}, v{S0}
        v_mul_f32 v{C1}, {hx(-K)}, v{S0}
        v_mul_f32 v{C3}, v{S0}, v{S0}
        v_mul_f32 v{C3}, v{C3}, v{C1}
        v_mul_f32 v{C3}, {hx(0.044715)}, v{C3}
        v_mov_b32 v251, v{S0}
        """)

    def a_addr_regs(self):
        a = self.a; L = 255; t0, t1, t2, t3 = 124, 125, 126, 127
        a(f"""
        v_lshrrev_b32 v{t0}, 5, v{L}
        v_bfe_u32 v{t1}, v{L}, 2, 2
        v_bfe_u32 v{t2}, v{L}, 1, 1
        v_lshlrev_b32 v240, 10, v{t0}
        v_lshl_add_u32 v240, v{t1}, 7, v240
        v_lshl_add_u32 v240, v{t2}, 11, v240
        v_xor_b32 v{t3}, v{t1}, v{t2}
        v_lshl_add_u32 v240, v{t3}, 5, v240
        v_bfe_u32 v{t3}, v{L}, 4, 1
        v_lshl_add_u32 v240, v{t3}, 4, v240
        v_and_b32 v{t2}, 1, v{L}
        v_lshl_add_u32 v240, v{t2}, 3, v240
        v_add_u32 v240, {RING}, v240
        v_xor_b32 v241, 32, v240
        v_xor_b32 v242, 64, v240
        v_xor_b32 v243, 0x60, v240
        v_lshlrev_b32 v244, 9, v{t0}
        v_lshl_add_u32 v244, v{t1}, 6, v244
        v_lshl_add_u32 v244, v{t3}, 5, v244
        v_and_b32 v{t2}, 3, v{L}
        v_lshl_add_u32 v244, v{t2}, 3, v244
        v_add_u32 v244, {RING}, v244
        v_lshlrev_b32 v245, 4, v{L}
        """)

    def center_job(self, ks, temps):
        M = 246; out = []
        ta, tb, tc, td = temps
        for i in (0, 2):
            x, y = 4 * ks + i, 4 * ks + i + 1
            out += [f"v_lshlrev_b32 v{ta}, 16, v{x}", f"v_and_b32 v{tb}, s48, v{x}",
                    f"v_lshlrev_b32 v{tc}, 16, v{y}", f"v_and_b32 v{td}, s48, v{y}",
                    f"v_sub_f32 v{ta}, v{ta}, v{M}", f"v_sub_f32 v{tb}, v{tb}, v{M}",
                    f"v_sub_f32 v{tc}, v{tc}, v{M}", f"v_sub_f32 v{td}, v{td}, v{M}",
                    f"v_cvt_pk_bf16_f32 v{x}, v{ta}, v{tb}", f"v_cvt_pk_bf16_f32 v{y}, v{tc}, v{td}"]
        return out

    def q_job(self, aq):
        a = self.a
        out = [f"v_mul_f32 v{aq+i}, v250, v{aq+i}" for i in range(16)]
        out += [f"v_cvt_pk_bf16_f32 v{aq+k}, v{aq+2*k}, v{aq+2*k+1}" for k in range(8)]
        out.append(f"v_add_u32 v{aq+8}, s49, v245")
        out.append(lambda: a.lds(f"ds_write_b128 v{aq+8}, {vr(aq,4)}", "Qw"))
        out.append(lambda: a.lds(f"ds_write_b128 v{aq+8}, {vr(aq+4,4)} offset:1024", "Qw"))
        return out

    def gelu_job(self, a0, t):
        a = self.a; C1, C3, IR2 = 247, 248, 249; ta, tb = 252, 253
        out = []
        for h in (0, 8):
            for i in (0, 2):
                ga, gb, ua, ub = a0+h+i, a0+h+i+1, a0+h+4+i, a0+h+5+i
                out += [f"v_mul_f32 v{ta}, v{ga}, v{ga}", f"v_mul_f32 v{tb}, v{gb}, v{gb}",
                        f"v_fma_f32 v{ta}, v{ta}, v{C3}, v{C1}", f"v_fma_f32 v{tb}, v{tb}, v{C3}, v{C1}",
                        f"v_mul_f32 v{ta}, v{ta}, v{ga}", f"v_mul_f32 v{tb}, v{tb}, v{gb}",
                        f"v_exp_f32 v{ta}, v{ta}", f"v_exp_f32 v{tb}, v{tb}",
                        f"v_mul_f32 v{ua}, v{ga}, v{ua}", f"v_mul_f32 v{ub}, v{gb}, v{ub}",
                        f"v_fma_f32 v{ta}, v{ta}, v{IR2}, v{IR2}", f"v_fma_f32 v{tb}, v{tb}, v{IR2}, v{IR2}",
                        f"v_rcp_f32 v{ta}, v{ta}", f"v_rcp_f32 v{tb}, v{tb}",
                        f"v_mul_f32 v{ua}, v{ua}, v{ta}", f"v_mul_f32 v{ub}, v{ub}, v{tb}"]
            out += [f"v_cvt_pk_bf16_f32 v{a0 + h//4}, v{a0+h+4}, v{a0+h+5}",
                    f"v_cvt_pk_bf16_f32 v{a0 + h//4 + 1}, v{a0+h+6}, v{a0+h+7}"]
        sreg = 50 + t // 4
        out.append(lambda: a.vmem(f"buffer_store_dwordx4 {vr(a0,4)}, v245, {sr(SWS,4)}, s{sreg} offen offset:{(t%4)*1024} sc1", "hst"))
        return out

    def plan(self, mseq, chunk_of, order, barpos):
        LA = self.o["LA"]; N = len(mseq)
        idx = {c: i for i, c in enumerate(order)}
        last = {}
        for n, m in enumerate(mseq): last[chunk_of(m)] = n
        need = []
        for j, p in enumerate(barpos):
            e = barpos[j + 1] if j + 1 < len(barpos) else N
            lo = 0 if j == 0 else p + LA
            mx = max([idx[chunk_of(mseq[n])] for n in range(lo, min(e + LA, N))] or [-1])
            need.append(max(mx, need[-1] if need else -1))
        rel = {}
        for c, n in last.items():
            k = [j for j, p in enumerate(barpos) if p > n]
            rel[idx[c]] = k[0] if k else len(barpos)
        return need, rel

    def mfma_stream(self, mseq, barpos, read_fn, mfma_fn, jobs, wf, pre_bar=None):
        a, o = self.a, self.o
        LA, BUD = o["LA"], o["bud"]; NB = len(wf); assert NB >= LA + 1
        N = len(mseq)
        jobs = [[list(j[0]), j[1], j[2]] for j in jobs]
        def emit(x):
            if callable(x): x(); return 1
            a(x); return 2 if x.startswith(("v_exp", "v_rcp")) else 1
        def run(gap, bud):
            c = 0
            while jobs:
                j = jobs[0]
                if not j[0]: jobs.pop(0); continue
                must = any(k[0] and k[2] - 2 <= gap for k in jobs)
                if j[1] > gap:
                    assert not must, ("job deadline infeasible", gap, j[1], j[2]); break
                if c >= bud and not must: break
                c += emit(j[0].pop(0))
        run(-1, 0)
        for n in range(N):
            if n in barpos:
                if pre_bar: pre_bar(barpos.index(n))
                a("s_barrier")
                if n == 0:
                    for k in range(LA): read_fn(mseq[k], wf[k % NB], k)
            a.need_lds(("w", n))
            mfma_fn(mseq[n], wf[n % NB])
            if n + LA < N: read_fn(mseq[n + LA], wf[(n + LA) % NB], n + LA)
            run(n, BUD)
        return jobs

    def f_sched(self):
        o = self.o
        mseq = [(t, ks) for ks in range(28) for t in ("q", 0, 1, 2, 3)]
        nA = len(mseq)
        mseq += [(t, ks) for ks in range(8) for t in (4, 5)]
        mseq += [(6, ks) for ks in range(8)]
        mseq += [(t, ks) for ks in range(8, 12) for t in (4, 5, 6)]
        mseq += [(7, ks) for ks in range(12)]
        mseq += [(t, ks) for ks in range(12, 24) for t in (4, 5, 6, 7)]
        mseq += [(t, ks) for t in (4, 5, 6, 7) for ks in range(24, 28)]
        order = []
        for g in range(7): order += [("Q", g)] + [("A", 4*g + i) for i in range(4)]
        order += [("B", ks) for ks in range(28)]
        def chunk_of(m):
            t, ks = m
            return ("Q", ks // 4) if t == "q" else ("A", ks) if t < 4 else ("B", ks)
        barpos = list(range(0, nA, o["barA"])) + list(range(nA, len(mseq) - 12, o["barB"]))
        return mseq, chunk_of, order, barpos

    def a_p1_F(self):
        a, o = self.a, self.o
        mseq, chunk_of, order, barpos = self.f_sched()
        slot = {c: (i + 4) % 16 for i, c in enumerate(order)}
        P = [112 + 16 * i for i in range(7)]
        acc = {"q": P[0], 0: P[1], 1: P[2], 2: P[3], 3: P[4], 4: P[5], 5: P[6], 6: P[0], 7: P[1]}
        self.freeacc = [P[2], P[3], P[4]]
        wf = [224, 228, 232, 236]
        a(f"""
        s_mov_b32 s48, 0xffff0000
        s_lshl_b32 s49, s{W4}, 11
        s_add_u32 s49, s49, {QREG}
        s_lshl_b32 s50, s{R_}, 2
        s_add_u32 s50, s50, s{W4}
        s_mul_i32 s50, s50, 112
        s_lshl_b32 s51, s{C_}, 3
        s_add_u32 s50, s50, s51
        s_lshl_b32 s50, s50, 10
        s_add_u32 s50, s50, {WS_H}
        s_add_u32 s51, s50, 4096
        """)
        first = {}; lastm = {}
        for n, (t, ks) in enumerate(mseq):
            first.setdefault(t, n); lastm[t] = n; first.setdefault(("x", ks), n)
        def read_fn(m, r, n):
            t, ks = m; b = slot[chunk_of(m)] * 4096
            if t == "q":
                ad, o0, o1 = 244, b + (ks % 4) * 1024, b + (ks % 4) * 1024 + 256
            else:
                ad, o0, o1 = 240 + t % 4, b, b + 512
            a.lds(f"ds_read_b64_tr_b16 {vr(r,2)}, v{ad} offset:{o0}", ("w", n))
            a.lds(f"ds_read_b64_tr_b16 {vr(r+2,2)}, v{ad} offset:{o1}", ("w", n))
        def mfma_fn(m, r):
            t, ks = m; d = acc[t]
            c = "0" if ks == 0 else vr(d, 16)
            a(f"v_mfma_f32_32x32x16_bf16 {vr(d,16)}, {vr(r,4)}, {vr(4*ks,4)}, {c}")
        BIG = 10**6
        jobs = [[self.center_job(ks, (P[5], P[5]+1, P[5]+2, P[5]+3)), -1, first[("x", ks)]] for ks in range(28)]
        jobs.append([self.q_job(acc["q"]), lastm["q"] + 3, first[6]])
        jobs.append([self.gelu_job(acc[0], 0), lastm[0] + 3, first[7]])
        for t in (1, 2, 3): jobs.append([self.gelu_job(acc[t], t), lastm[t] + 3, BIG])
        jobs.append([self.att_prefetch(), barpos[-1], BIG])
        for t in (4, 5, 6, 7): jobs.append([self.gelu_job(acc[t], t), lastm[t] + 3, BIG])
        def pre_bar(j):
            if j == len(barpos) - 1: a.need_lds("Qw")
        rest = self.mfma_stream(mseq, barpos, read_fn, mfma_fn, jobs, wf, pre_bar)
        self.stamp(2)
        for j in rest:
            for x in j[0]:
                x() if callable(x) else a(x)
        self.stamp(3)

    def b_p1_F(self):
        a, o = self.a, self.o
        mseq, chunk_of, order, barpos = self.f_sched()
        need, rel = self.plan(mseq, chunk_of, order, barpos)
        L = 255; vW, vQ = 240, 241
        a(f"""
        v_lshrrev_b32 v1, 3, v{L}
        v_mul_u32_u24 v{vW}, 3584, v1
        v_and_b32 v1, 3, v1
        s_and_b32 s44, s{W4}, 1
        v_xor_b32 v1, s44, v1
        v_bfe_u32 v2, v{L}, 1, 2
        v_xor_b32 v1, v1, v2
        v_lshl_add_u32 v{vW}, v1, 5, v{vW}
        v_and_b32 v1, 1, v{L}
        v_lshl_add_u32 v{vW}, v1, 4, v{vW}
        v_lshrrev_b32 v1, 2, v{L}
        v_mul_u32_u24 v{vQ}, 896, v1
        v_and_b32 v1, 3, v{L}
        v_lshl_add_u32 v{vQ}, v1, 4, v{vQ}
        s_lshr_b32 s45, s{W4}, 1
        s_mul_i32 s50, s45, {8*3584}
        s_lshl_b32 s46, s{C_}, 8
        s_add_u32 s50, s50, s46
        s_lshl_b32 s51, s44, 11
        s_lshl_b32 s45, s45, 10
        s_add_u32 s51, s51, s45
        s_add_u32 s51, s51, {RING}
        s_mul_i32 s52, s{W4}, {16*896}
        s_mul_i32 s46, s{C_}, 56
        s_add_u32 s52, s52, s46
        s_lshl_b32 s53, s{W4}, 10
        s_add_u32 s53, s53, {RING}
        """)
        def issue(i):
            kind, k = order[i]; sl = ((i + 4) % 16) * 4096
            if kind == "Q":
                a(f"s_add_u32 m0, s53, {sl}\ns_add_u32 s46, s52, {k*64*896}")
                a.vmem(f"buffer_load_dwordx4 v{vQ}, {sr(SWQ,4)}, s46 offen lds", i)
            else:
                a(f"s_add_u32 m0, s51, {sl}\ns_add_u32 s46, s50, {k*16*3584 + (128 if kind == 'B' else 0)}")
                a.vmem(f"buffer_load_dwordx4 v{vW}, {sr(SW1,4)}, s46 offen lds", i)
        self.b_loader(order, need, rel, barpos, issue)

    def b_loader(self, order, need, rel, barpos, issue):
        a = self.a
        a("s_barrier")
        nxt = 0
        for j in range(len(barpos)):
            while nxt < len(order):
                if nxt >= 16: ok = rel[nxt - 16] <= j - 1
                elif nxt >= 12: ok = j >= 1
                else: ok = True
                if not ok: break
                issue(nxt); nxt += 1
            assert nxt > need[j], (j, nxt, need[j])
            if j == len(barpos) - 1:
                assert nxt == len(order)
                a("v_mov_b32 v1, 0\ns_mov_b64 s[54:55], -1")
                self.poll(SDBG, "0", 1, 2, 32, 54)
            else:
                a.need_vm(need[j])
            a("s_barrier")

    def s_sched(self):
        mseq = [(t, ks) for ks in range(28) for t in ("q", "k", "v")]
        order = []
        for g in range(7): order += [("Q", g), ("K", g)]
        def chunk_of(m): return ("Q" if m[0] == "q" else "K", m[1] // 4)
        barpos = list(range(0, len(mseq), 12))
        return mseq, chunk_of, order, barpos

    def a_p1_S(self):
        a, o = self.a, self.o
        mseq, chunk_of, order, barpos = self.s_sched()
        slot = {c: (i + 4) % 16 for i, c in enumerate(order)}
        P = [112 + 16 * i for i in range(7)]
        acc = {"q": P[0], "k": P[1], "v": P[2]}
        wf = [224, 228, 232, 236]
        a(f"s_mov_b32 s48, 0xffff0000\ns_lshl_b32 s49, s{W4}, 11\ns_add_u32 s49, s49, {QREG}")
        first = {}
        for n, (t, ks) in enumerate(mseq): first.setdefault(ks, n)
        def read_fn(m, r, n):
            t, ks = m; b = slot[chunk_of(m)] * 4096 + (ks % 4) * 1024
            a.lds(f"ds_read_b64_tr_b16 {vr(r,2)}, v244 offset:{b}", ("w", n))
            a.lds(f"ds_read_b64_tr_b16 {vr(r+2,2)}, v244 offset:{b+256}", ("w", n))
        def mfma_fn(m, r):
            t, ks = m; d = acc[t]; c = "0" if ks == 0 else vr(d, 16)
            x, y = (vr(4*ks, 4), vr(r, 4)) if t == "v" else (vr(r, 4), vr(4*ks, 4))
            a(f"v_mfma_f32_32x32x16_bf16 {vr(d,16)}, {x}, {y}, {c}")
        jobs = [[self.center_job(ks, (P[5], P[5]+1, P[5]+2, P[5]+3)), -1, first[ks]] for ks in range(28)]
        sv = o["bud"]; o["bud"] = 7
        rest = self.mfma_stream(mseq, barpos, read_fn, mfma_fn, jobs, wf)
        o["bud"] = sv
        assert not any(j[0] for j in rest)
        self.stamp(2)
        L = 255; RS = 251; t0, t1, t2 = P[5], P[5] + 1, P[5] + 2
        a(f"""
        s_lshl_b32 s50, s{R_}, 2
        s_add_u32 s50, s50, s{W4}
        s_lshl_b32 s50, s50, 12
        s_cmp_eq_u32 s{C_}, 15
        s_cbranch_scc1 L_vepi
        """)
        k = acc["k"]
        a(f"""
        v_cmp_gt_u32 vcc, 32, v{L}
        v_bfe_u32 v{t1}, v{L}, 2, 1
        v_bfe_u32 v{t2}, v{L}, 3, 1
        v_cndmask_b32 v{t0}, 0, v{RS}, vcc
        v_xor_b32 v{t1}, v{t1}, v{t2}
        v_mul_u32_u24 v{t1}, 12, v{t1}
        v_xor_b32 v{t1}, v{t1}, v{L}
        v_lshlrev_b32 v{t1}, 4, v{t1}
        s_nop 7
        """)
        for i in range(16): a(f"v_mul_f32 v{k+i}, v{RS if i < 12 else t0}, v{k+i}")
        for i in range(8): a(f"v_cvt_pk_bf16_f32 v{k+i}, v{k+2*i}, v{k+2*i+1}")
        a(f"buffer_store_dwordx4 {vr(k,4)}, v{t1}, {sr(SWS,4)}, s50 offen sc1")
        a(f"buffer_store_dwordx4 {vr(k+4,4)}, v{t1}, {sr(SWS,4)}, s50 offen offset:1024 sc1")
        a("s_branch L_kvdone")
        a.label("L_vepi")
        v = acc["v"]; rr = P[3]
        a(f"""
        s_lshl_b32 s51, s{W4}, 7
        s_add_u32 s51, s51, {RREG}
        v_and_b32 v{t0}, 31, v{L}
        v_lshl_add_u32 v{t1}, v{t0}, 2, s51
        ds_write_b32 v{t1}, v{RS}
        v_lshrrev_b32 v{t1}, 5, v{L}
        v_lshl_add_u32 v{t1}, v{t1}, 4, s51
        s_waitcnt lgkmcnt(0)
        """)
        for j in range(4): a(f"ds_read_b128 {vr(rr+4*j,4)}, v{t1} offset:{32*j}")
        a(f"""
        v_cmp_eq_u32 vcc, 28, v{t0}
        v_mov_b32 v{t2}, 0x3f803f80
        s_nop 0
        v_cndmask_b32 v{t2}, 0, v{t2}, vcc
        v_cmp_gt_u32 vcc, 28, v{t0}
        s_waitcnt lgkmcnt(0)
        """)
        for i in range(16): a(f"v_mul_f32 v{v+i}, v{rr+i}, v{v+i}")
        for i in range(8): a(f"v_cvt_pk_bf16_f32 v{v+i}, v{v+2*i}, v{v+2*i+1}")
        for i in range(8): a(f"v_cndmask_b32 v{v+i}, v{t2}, v{v+i}, vcc")
        a(f"buffer_store_dwordx4 {vr(v,4)}, v245, {sr(SWS,4)}, s50 offen offset:2048 sc1")
        a(f"buffer_store_dwordx4 {vr(v+4,4)}, v245, {sr(SWS,4)}, s50 offen offset:3072 sc1")
        a.label("L_kvdone")
        a.reset()
        for x in self.q_job(acc["q"]):
            x() if callable(x) else a(x)
        a("s_waitcnt vmcnt(0) lgkmcnt(0)"); a.reset()
        a("s_barrier")
        self.stamp(3)
        a("s_barrier")
        for x in self.att_prefetch():
            x() if callable(x) else a(x)

    def b_p1_S(self):
        a, o = self.a, self.o
        mseq, chunk_of, order, barpos = self.s_sched()
        need, rel = self.plan(mseq, chunk_of, order, barpos)
        L = 255; vK, vQ = 240, 241
        a(f"""
        v_lshrrev_b32 v1, 2, v{L}
        v_mul_u32_u24 v{vQ}, 896, v1
        v_mul_u32_u24 v{vK}, 56, v1
        v_and_b32 v1, 3, v{L}
        v_lshl_add_u32 v{vQ}, v1, 4, v{vQ}
        v_lshl_add_u32 v{vK}, v1, 4, v{vK}
        s_mul_i32 s50, s{W4}, {16*56}
        s_mul_i32 s52, s{W4}, {16*896}
        s_mul_i32 s46, s{C_}, 56
        s_add_u32 s52, s52, s46
        s_lshl_b32 s53, s{W4}, 10
        s_add_u32 s53, s53, {RING}
        v_mov_b32 v2, 0
        v_mov_b32 v3, 0
        v_lshlrev_b32 v1, 3, v{L}
        s_lshl_b32 s46, s{R_}, 9
        s_add_u32 s46, s46, {WS_FLG}
        """)
        a.vmem(f"buffer_store_dwordx2 v[2:3], v1, {sr(SWS,4)}, s46 offen sc1", "clr")
        a("s_barrier")
        nxt = 0
        for j in range(len(barpos)):
            while nxt < len(order) and (nxt < 12 or j >= 1):
                kind, k = order[nxt]; sl = ((nxt + 4) % 16) * 4096
                if kind == "Q":
                    a(f"s_add_u32 m0, s53, {sl}\ns_add_u32 s46, s52, {k*64*896}")
                    a.vmem(f"buffer_load_dwordx4 v{vQ}, {sr(SWQ,4)}, s46 offen lds", nxt)
                else:
                    a(f"s_add_u32 m0, s53, {sl}\ns_add_u32 s46, s50, {k*64*56}")
                    a.vmem(f"buffer_load_dwordx4 v{vK}, {sr(SW1,4)}, s46 offen lds", nxt)
                nxt += 1
            a.need_vm(need[j])
            a("s_barrier")
        a.drain_vm()
        a("s_barrier")
        a(f"""
        s_cmp_lg_u32 s{W4}, 0
        s_cbranch_scc1 L_noarr
        v_mov_b32 v1, 0
        v_mov_b32 v2, 1
        s_mov_b64 exec, 1
        buffer_atomic_add v2, v1, {sr(SDBG,4)}, 0 offen sc1
        s_mov_b64 exec, -1
        """)
        a.label("L_noarr")
        a("v_mov_b32 v1, 0\ns_mov_b64 s[54:55], -1")
        self.poll(SDBG, "0", 1, 2, 32, 54)
        a("s_barrier")
        self.dump_stamps(4)
        a("s_endpgm")

    KV = [0, 16]; QF = 32; OB = [64, 80, 96, 144]; SB = [160, 176, 192, 208]
    def att_prefetch(self):
        a = self.a; out = []
        out.append(f"s_lshl_b32 s52, s{W4}, 16")
        for T in (0, 1):
            for i in range(4):
                out.append(lambda T=T, i=i: a.vmem(
                    f"buffer_load_dwordx4 {vr(self.KV[T] + 4*i, 4)}, v245, {sr(SWS,4)}, s52 offen offset:{i*1024} sc1", ("kv", T)))
            out.append("s_add_u32 s52, s52, 4096")
        for j in range(4):
            out += [f"s_add_u32 s53, s{W4}, {j}", "s_and_b32 s53, s53, 3", "s_lshl_b32 s53, s53, 11", f"s_add_u32 s53, s53, {QREG}",
                    f"v_add_u32 v254, s53, v245"]
            for i in range(2):
                out.append(lambda j=j, i=i: a.lds(f"ds_read_b128 {vr(self.QF + 8*j + 4*i, 4)}, v254 offset:{1024*i}", "Qr"))
        return out

    def attention(self):
        a, o = self.a, self.o
        KV, QF, OB, SB = self.KV, self.QF, self.OB, self.SB
        IDX, Z = 246, 224
        a.label("L_att")
        a(f"v_mov_b32 v{IDX}, 0xdddddddd")
        for i in range(4): a(f"v_mov_b32 v{Z+i}, 0")
        a(f"""
        s_lshl_b32 s54, s{R_}, 9
        s_add_u32 s54, s54, {WS_FLG}
        s_lshl_b32 s55, s{C_}, 4
        s_add_u32 s54, s54, s55
        s_lshl_b32 s55, s{W4}, 2
        s_add_u32 s54, s54, s55
        v_mov_b32 v247, 0
        v_mov_b32 v248, 1
        s_mov_b32 s53, 8
        """)
        for j in range(4): a(f"v_mfma_f32_32x32x16_bf16 {vr(OB[j],16)}, {vr(Z,4)}, {vr(Z,4)}, 0")
        a("s_waitcnt vmcnt(4) lgkmcnt(0)"); a.reset()
        def qk(T, q, i):
            c = "0" if i == 0 else vr(SB[q], 16)
            a(f"v_mfma_f32_32x32x16_bf16 {vr(SB[q],16)}, {vr(KV[T%2] + 4*i, 4)}, {vr(QF + 8*q + 4*i, 4)}, {c}")
        def pv(T, q, i):
            a(f"v_smfmac_f32_32x32x32_bf16 {vr(OB[q],16)}, {vr(KV[T%2] + 8 + 4*i, 4)}, {vr(SB[q] + 8*i, 8)}, v{IDX}")
        def ex(q, k):
            for i in range(4 * k, 4 * k + 4): a(f"v_exp_f32 v{SB[q]+i}, v{SB[q]+i}")
        qk(0, 0, 0); qk(0, 0, 1)
        for i in range(8, 16): a(f"v_mov_b32 v{SB[3]+i}, 0")
        a("s_nop 4")
        self.stamp(4)
        body0 = len(a.lines)
        a.label("L_attloop")
        for T in (0, 1):
            for q in range(4):
                Tn, qn = (T, q + 1) if q < 3 else (T + 1, 0)
                Tp, qp = (T, q - 1) if q > 0 else (T - 1, 3)
                if q == 3: a("s_waitcnt vmcnt(2)")
                qk(Tn, qn, 0)
                if q == 3:
                    for i in range(2):
                        a(f"buffer_load_dwordx4 {vr(KV[T] + 4*i, 4)}, v245, {sr(SWS,4)}, s52 offen offset:{i*1024} sc1")
                    if T == 1:
                        Lk = a.newlabel("L_nof")
                        a(f"s_cmp_lg_u32 s53, 8\ns_cbranch_scc1 {Lk}")
                        a(f"buffer_store_dword v248, v247, {sr(SWS,4)}, s54 offen sc1")
                        a.label(Lk)
                if q == 1:
                    for i in range(2):
                        a(f"buffer_load_dwordx4 {vr(KV[(T+1)%2] + 8 + 4*i, 4)}, v245, {sr(SWS,4)}, s56 offen offset:{2048 + i*1024} sc1")
                    a("s_mov_b32 s56, s52") if False else None
                ex(q, 0)
                qk(Tn, qn, 1)
                ex(q, 1)
                pv(Tp, qp, 1)
                ex(q, 2)
                if q == 0: a("s_waitcnt vmcnt(2)")
                pv(T, q, 0)
                if q == 3: a("s_mov_b32 s56, s52\ns_add_u32 s52, s52, 4096")
                if q == 2 and T == 1: a("s_sub_u32 s53, s53, 1") if False else None
                ex(q, 3)
        a("s_sub_u32 s53, s53, 1\ns_cmp_lg_u32 s53, 0\ns_cbranch_scc1 L_attloop")
        self.loop_lines = a.lines[body0:]
        pv(1, 3, 1)
        self.stamp(5)
        RB = RING
        a(f"s_nop 7\ns_nop 3")
        for j in (1, 2, 3):
            a(f"s_add_u32 s53, s{W4}, {j}\ns_and_b32 s53, s53, 3\ns_mul_i32 s53, s53, 12288\ns_add_u32 s53, s53, {RB + (j-1)*4096}")
            a(f"v_add_u32 v254, s53, v245")
            for i in range(4): a(f"ds_write_b128 v254, {vr(OB[j] + 4*i, 4)} offset:{1024*i}")
        a(f"s_mul_i32 s53, s{W4}, 12288\ns_add_u32 s53, s53, {RB}\nv_add_u32 v254, s53, v245")
        a("s_waitcnt lgkmcnt(0)\ns_barrier")
        for j in range(3):
            for i in range(4): a.lds(f"ds_read_b128 {vr(SB[j] + 4*i, 4)}, v254 offset:{4096*j + 1024*i}", ("or", j))
        a(f"""
        s_lshl_b32 s55, s{R_}, 2
        s_add_u32 s55, s55, s{W4}
        s_lshl_b32 s55, s55, 5
        s_lshl_b32 s53, s{C_}, 1
        s_add_u32 s55, s55, s53
        s_lshl_b32 s55, s55, 10
        s_add_u32 s55, s55, {WS_O}
        """)
        O = OB[0]
        for j in range(3):
            a.need_lds(("or", j))
            for i in range(16): a(f"v_add_f32 v{O+i}, v{O+i}, v{SB[j]+i}")
        t1, t2 = 252, 253
        a(f"""
        v_mov_b32 v{t1}, v{O+12}
        v_mov_b32 v{t2}, v{O+12}
        s_nop 1
        v_permlane32_swap_b32 v{t1}, v{t2}
        s_nop 1
        v_cmp_le_f32 vcc, {hx(2.0**-60)}, v{t2}
        v_mov_b32 v{t1}, {hx(2.0**60)}
        v_cmp_ge_f32 s[44:45], v{t1}, v{t2}
        s_nop 1
        s_and_b64 s[44:45], s[44:45], vcc
        s_cmp_eq_u64 s[44:45], -1
        """)
        a("s_cbranch_scc1 L_slow" if o["force_slow"] else "s_cbranch_scc0 L_slow")
        a.label("L_norm")
        a(f"""
        v_rcp_f32 v{t2}, v{t2}
        v_cmp_gt_u32 vcc, 32, v255
        s_nop 1
        v_cndmask_b32 v{t1}, 0, v{t2}, vcc
        """)
        for i in range(16): a(f"v_mul_f32 v{O+i}, v{t2 if i < 12 else t1}, v{O+i}")
        for i in range(8): a(f"v_cvt_pk_bf16_f32 v{O+i}, v{O+2*i}, v{O+2*i+1}")
        a(f"buffer_store_dwordx4 {vr(O,4)}, v245, {sr(SWS,4)}, s55 offen sc1")
        a(f"buffer_store_dwordx4 {vr(O+4,4)}, v245, {sr(SWS,4)}, s55 offen offset:1024 sc1")
        a("s_waitcnt vmcnt(0)")
        a(f"buffer_store_dword v248, v247, {sr(SWS,4)}, s54 offen offset:256 sc1")
        self.stamp(6)
        self.dump_stamps(4)
        a("s_endpgm")
        S = SB[0]; MX = 254
        a.label("L_slow")
        a(f"v_mov_b32 v{MX}, 0xff800000\ns_mov_b32 s52, 0")
        a.label("L_slow1")
        for i in range(2): a(f"buffer_load_dwordx4 {vr(4*i,4)}, v245, {sr(SWS,4)}, s52 offen offset:{i*1024} sc1")
        a("s_waitcnt vmcnt(0)")
        qk(0, 0, 0); qk(0, 0, 1)
        a("s_nop 7\ns_nop 3")
        for i in range(0, 16, 2): a(f"v_max3_f32 v{MX}, v{MX}, v{S+i}, v{S+i+1}")
        a(f"s_add_u32 s52, s52, 4096\ns_cmp_lt_u32 s52, {64*4096}\ns_cbranch_scc1 L_slow1")
        a(f"v_mov_b32 v{t1}, v{MX}\ns_nop 1\nv_permlane32_swap_b32 v{MX}, v{t1}\ns_nop 1\nv_max_f32 v{MX}, v{MX}, v{t1}")
        for i in range(16): a(f"v_mov_b32 v{O+i}, 0")
        a("s_mov_b32 s52, 0")
        a.label("L_slow2")
        for i in range(4): a(f"buffer_load_dwordx4 {vr(4*i,4)}, v245, {sr(SWS,4)}, s52 offen offset:{i*1024} sc1")
        a("s_waitcnt vmcnt(0)")
        qk(0, 0, 0); qk(0, 0, 1)
        a("s_nop 7\ns_nop 3")
        for i in range(16): a(f"v_sub_f32 v{S+i}, v{S+i}, v{MX}")
        for i in range(16): a(f"v_exp_f32 v{S+i}, v{S+i}")
        a("s_nop 1")
        pv(0, 0, 0); pv(0, 0, 1)
        a(f"s_add_u32 s52, s52, 4096\ns_cmp_lt_u32 s52, {64*4096}\ns_cbranch_scc1 L_slow2")
        a(f"""
        s_nop 7
        s_nop 3
        v_mov_b32 v{t1}, v{O+12}
        v_mov_b32 v{t2}, v{O+12}
        s_nop 1
        v_permlane32_swap_b32 v{t1}, v{t2}
        s_nop 1
        s_branch L_norm
        """)

    def b_wsetup(self):
        a = self.a; L = 255
        a(f"""
        s_cmp_ge_u32 s{C_}, 7
        s_cselect_b32 s56, 1, 0
        s_mul_i32 s57, s56, 7
        s_sub_u32 s57, s{C_}, s57
        v_lshrrev_b32 v1, 3, v{L}
        v_mul_u32_u24 v242, 896, v1
        v_bfe_u32 v1, v{L}, 4, 1
        v_lshlrev_b32 v1, 2, v1
        v_and_b32 v2, 7, v{L}
        v_xor_b32 v1, v1, v2
        v_lshl_add_u32 v242, v1, 4, v242
        s_mul_i32 s58, s{W4}, {GW}
        s_mul_i32 s59, s{W4}, {448*896}
        s_lshl_b32 s46, s57, 7
        s_add_u32 s59, s59, s46
        s_mul_i32 s60, s{W4}, {112*896}
        s_add_u32 s60, s60, s46
        v_lshrrev_b32 v1, 5, v{L}
        v_lshlrev_b32 v243, 9, v1
        v_bfe_u32 v1, v{L}, 2, 2
        v_lshl_add_u32 v243, v1, 7, v243
        v_bfe_u32 v1, v{L}, 3, 1
        s_and_b32 s46, s{W4}, 1
        v_xor_b32 v1, s46, v1
        v_lshl_add_u32 v243, v1, 6, v243
        v_bfe_u32 v1, v{L}, 4, 1
        v_lshl_add_u32 v243, v1, 5, v243
        v_and_b32 v1, 3, v{L}
        v_lshl_add_u32 v243, v1, 3, v243
        v_add_u32 v243, s58, v243
        v_xor_b32 v244, 64, v243
        v_lshlrev_b32 v245, 4, v{L}
        v_lshlrev_b32 v246, 2, v{L}
        """)
    def wdma(self, ks):
        a = self.a; sl = (ks % NWS) * 2048
        for i in range(2):
            a(f"s_add_u32 m0, s58, {sl + i*1024}")
            if ks < 28:
                a(f"s_add_u32 s46, s59, {(ks*16 + 8*i) * 896}")
                a.vmem(f"buffer_load_dwordx4 v242, {sr(SWD,4)}, s46 offen lds", ("w", ks))
            else:
                k = ks - 28
                a(f"s_add_u32 s46, s60, {((k//2)*28 + (k%2)*16 + 8*i) * 896}")
                a.vmem(f"buffer_load_dwordx4 v242, {sr(SWO,4)}, s46 offen lds", ("w", ks))
    def b_wprefetch(self):
        self.b_wsetup()
        for ks in range(NWS): self.wdma(ks)

    def b_gemm2(self):
        a, o = self.a, self.o
        L = 255; NP = o["npre"]; HF = 80; WF = 64
        self.stamp(2)
        a(f"""
        s_lshl_b32 s46, s{R_}, 2
        s_lshl_b32 s47, s56, 1
        s_add_u32 s46, s46, s47
        s_lshr_b32 s47, s{W4}, 1
        s_add_u32 s48, s46, s47
        s_xor_b32 s49, s48, 1
        s_mul_i32 s61, s48, 112
        s_mul_i32 s62, s49, 112
        s_mul_i32 s47, s{W4}, 28
        s_add_u32 s61, s61, s47
        s_add_u32 s62, s62, s47
        s_lshl_b32 s61, s61, 10
        s_lshl_b32 s62, s62, 10
        s_add_u32 s61, s61, {WS_H}
        s_add_u32 s62, s62, {WS_H}
        s_lshl_b32 s88, s48, 5
        s_lshl_b32 s89, s49, 5
        s_lshl_b32 s47, s{W4}, 3
        s_add_u32 s88, s88, s47
        s_add_u32 s89, s89, s47
        s_lshl_b32 s88, s88, 10
        s_lshl_b32 s89, s89, 10
        s_add_u32 s88, s88, {WS_O}
        s_add_u32 s89, s89, {WS_O}
        s_lshl_b32 s63, s{R_}, 9
        s_add_u32 s63, s63, {WS_FLG}
        s_lshl_b32 s47, s56, 1
        s_mov_b32 s90, 0x33333333
        s_mov_b32 s91, 0x00333333
        s_lshl_b64 s[90:91], s[90:91], s47
        s_lshl_b32 s49, s{W4}, 4
        s_add_u32 s47, s47, s49
        s_mov_b64 s[92:93], 0x3333
        s_lshl_b64 s[92:93], s[92:93], s47
        v_and_b32 v1, 31, v{L}
        v_mul_u32_u24 v247, 896, v1
        v_lshrrev_b32 v1, 5, v{L}
        v_lshl_add_u32 v248, v1, 4, v247
        v_lshl_add_u32 v247, v1, 3, v247
        s_mul_i32 s94, s48, {32*896}
        s_lshl_b32 s47, s57, 7
        s_add_u32 s94, s94, s47
        s_and_b32 s47, s{W4}, 1
        s_lshl_b32 s47, s47, 6
        s_add_u32 s94, s94, s47
        """)
        for j in range(4):
            a.vmem(f"buffer_load_dwordx2 {vr(WF + 2*j, 2)}, v247, {sr(SX,4)}, s94 offen offset:{16*j}", "xr")
        for i in range(16, 64): a(f"v_mov_b32 v{i}, 0")
        a.need_vm("xr")
        for j in range(8):
            a(f"v_lshlrev_b32 v{2*j}, 16, v{WF+j}\nv_and_b32 v{2*j+1}, 0xffff0000, v{WF+j}")
        self.poll(SWS, "s63", 246, 249, 1, 90)
        self.stamp(3)
        def hreg(ks, rt): return HF + (ks % NP) * 8 + 4 * rt
        def hload(ks):
            for rt in range(2):
                if ks < 28:
                    s = 61 + rt; k = ks
                else:
                    s = 88 + rt; k = ks - 28
                a.vmem(f"buffer_load_dwordx4 {vr(hreg(ks, rt), 4)}, v245, {sr(SWS,4)}, s{s} offen offset:{(k%4)*1024} sc1", ("h", ks))
                if k % 4 == 3: a(f"s_add_u32 s{s}, s{s}, 4096")
        for ks in range(NP): hload(ks)
        self.stamp(4)
        a("s_barrier")
        self.stamp(5)
        def wread(ks):
            for ct in range(2):
                for j in range(2):
                    a.lds(f"ds_read_b64_tr_b16 {vr(WF + (ks%2)*8 + 4*ct + 2*j, 2)}, v{243+ct} offset:{(ks%NWS)*2048 + j*1024}", ("wr", ks))
        wread(0)
        for ks in range(36):
            if ks == o["opoll"]:
                self.stamp(6)
                a("s_add_u32 s63, s63, 256")
                self.poll(SWS, "s63", 246, 249, 1, 92)
                self.stamp(7)
                assert ks >= 36 - NP
                for k2 in range(28, 36): hload(k2)
            if ks + 1 < 36:
                a.need_vm(("w", ks + 1)); wread(ks + 1)
            a.need_lds(("wr", ks)); a.need_vm(("h", ks))
            for j in range(4):
                ct, rt = j & 1, j >> 1
                a(f"v_mfma_f32_32x32x16_bf16 {vr(16*j,16)}, {vr(WF + (ks%2)*8 + 4*ct, 4)}, {vr(hreg(ks, rt), 4)}, {vr(16*j,16)}")
                if j == 0 and ks + NWS < 36: self.wdma(ks + NWS)
                if j == 3 and ks + NP < 28: hload(ks + NP)
        self.stamp(8)
        a("s_nop 7\ns_nop 3")
        a("v_add_u32 v249, s58, v245")
        for j in (1, 2, 3):
            for i in range(4): a(f"ds_write_b128 v249, {vr(16*j + 4*i, 4)} offset:{(j-1)*4096 + 1024*i}")
        for j in (1, 2, 3):
            a(f"s_xor_b32 s46, s{W4}, {j}\ns_mul_i32 s46, s46, {GW}\nv_add_u32 v{249+j}, s46, v245")
        a("s_waitcnt lgkmcnt(0)\ns_barrier"); a.lg = []
        for j in range(3):
            for i in range(4): a.lds(f"ds_read_b128 {vr(HF + 16*j + 4*i, 4)}, v{250+j} offset:{4096*j + 1024*i}", ("rr", j))
        for j in range(3):
            a.need_lds(("rr", j))
            for i in range(16): a(f"v_add_f32 v{i}, v{i}, v{HF + 16*j + i}")
        for i in range(8): a(f"v_cvt_pk_bf16_f32 v{i}, v{2*i}, v{2*i+1}")
        a("s_nop 1")
        for p in (0, 4):
            a(f"v_permlane32_swap_b32 v{p}, v{p+2}\nv_permlane32_swap_b32 v{p+1}, v{p+3}")
        a("s_nop 1")
        for p in (0, 1):
            a(f"buffer_store_dwordx4 {vr(4*p,4)}, v248, {sr(SOUT,4)}, s94 offen offset:{32*p}")
        self.stamp(9)
        self.dump_stamps(16)
        a("s_endpgm")

    def codeprefetch(self):
        a = self.a
        if not self.o["codepf"]: return
        a(f"""
        s_getpc_b64 s[44:45]
        s_and_b32 s44, s44, 0xfffff000
        s_lshr_b32 s46, s2, 3
        s_lshl_b32 s46, s46, 2
        s_add_u32 s46, s46, s{W4}
        s_lshl_b32 s46, s46, 8
        v_lshl_add_u32 v1, v255, 2, s46
        v_min_u32 v1, v1, v3
        global_load_dword v2, v1, s[44:45]
        """)

    def build(self):
        a = self.a
        self.prologue()
        self.a_p0()
        a(f"s_cmp_ge_u32 s{C_}, 14\ns_cbranch_scc1 L_AS")
        a.reset(); self.a_p1_F()
        a("s_branch L_att0")
        a.label("L_AS")
        a.reset(); self.a_p1_S()
        a("s_waitcnt vmcnt(0)")
        a.label("L_att0")
        a("s_sub_u32 s56, s52, 4096")
        a.reset(); self.attention()
        a.label("L_B")
        a.reset()
        a(f"s_cmp_ge_u32 s{C_}, 14\ns_cbranch_scc1 L_BS")
        self.b_p1_F(); self.b_wprefetch(); self.b_gemm2()
        a.label("L_BS")
        a.reset(); self.b_p1_S()
        a.label("L_end")
        return self.finish()

    def finish(self):
        lines = fix_hazards(self.a.lines)
        i0 = lines.index("L_attloop:"); i1 = max(i for i, l in enumerate(lines) if "s_cbranch_scc1 L_attloop" in l)
        pr = check_hazards(lines[i0:i1 + 1] * 2, "loop")
        assert not pr, pr
        head = open("cdna_kernels/" + NAME + ".s.ref").read().split("; Override launch")[0]
        s = head + f"; @launch grid=(256,1,1) block=(512,1,1) lds=163840\n"
        s += f""".amdgcn_target "amdgcn-amd-amdhsa--gfx950"
.text
.globl {NAME}_kernel
.p2align 8
.type {NAME}_kernel,@function
{NAME}_kernel:
""" + "\n".join(lines) + f"""
    s_endpgm
.section .rodata,"a"
.p2align 6
.amdhsa_kernel {NAME}_kernel
  .amdhsa_next_free_vgpr 256
  .amdhsa_next_free_sgpr 102
  .amdhsa_accum_offset 256
  .amdhsa_group_segment_fixed_size 0
  .amdhsa_kernarg_size 96
  .amdhsa_user_sgpr_count 2
  .amdhsa_user_sgpr_kernarg_segment_ptr 1
  .amdhsa_system_sgpr_workgroup_id_x 1
.end_amdhsa_kernel
"""
        return s

def fix_hazards(lines, verbose=True):
    import re
    out = []; n = 0
    for ln in lines:
        if parse(ln) is not None:
            pr = check_hazards(out[-40:] + [ln])
            pr = [p for p in pr if p.endswith("-> [" + parse(ln).text + "]")]
            tail = check_hazards(out[-40:])
            pr = [p for p in pr if p not in tail]
            if pr:
                k = max(int(re.search(r"need (\d+)", p).group(1)) - int(re.search(r"have (\d+)", p).group(1)) for p in pr)
                if verbose: print("; auto nop", k, pr[0], file=sys.stderr)
                out.append(f"    s_nop {k-1}"); n += 1
        out.append(ln)
    return out

if __name__ == "__main__":
    kw = {}
    outp = "cdna_kernels/" + NAME + ".s"
    for arg in sys.argv[1:]:
        k, v = arg.split("=")
        if k == "out": outp = v; continue
        try: v = eval(v)
        except Exception: pass
        kw[k] = v
    open(outp, "w").write(Gen(**kw).build())
```

```python
import sys, struct, math, re
from asmlib import Asm, vr, sr, check_hazards, parse

NAME = "parallel_sum__grouped_kv_mqa__glu_gated_geglu__prompt"
WS_KV, WS_H, WS_O, WS_FLG, WS_DBG, WS_SIZE = 0, 0x100000, 0x800000, 0xA00000, 0xB00000, 0x1000000
RING = 98304
QREG = 90112
RREG = 89600
GW = 22528
NWS = 11

def f2u(x): return struct.unpack("<I", struct.pack("<f", x))[0]
def hx(x): return hex(f2u(x))

SX, SWQ, SW1, SWS, SWD, SWO, SOUT, SDBG = 8, 12, 16, 20, 24, 28, 32, 36
R_, C_, WV, W4, ROT, CF, SP = 40, 41, 42, 43, 95, 100, 101
AT, L16, C1, C3, IR2, AQ, M, QS, RS, TA, TB, TC, LANE = 240, 244, 245, 246, 247, 248, 249, 250, 251, 252, 253, 254, 255
P = [112 + 16 * i for i in range(7)]
BIG = 10**6

DEF = dict(mapping="B", bud=4, stamps=False, mimic=True, spin=200000, opoll=16, npre=20, force_slow=False,
           barA=10, barB=8, codepf=True, kvsc=" sc1", hsc=" sc1", osc=" sc1", stsc=" sc1",
           rot=True, LA=6, wbatch=2, bwin=6, early=4, hold=0, kvrot=True, bar0=6, nobar=False, nofill=False, noread=False, bprio=3,
           npre0=0, wearly=True, psleep=8, l2warm=True, nws=14, ownlast=True)

def run_job(a, job):
    for x in job:
        x() if callable(x) else a(x)

class Gen:
    def __init__(self, **kw):
        self.o = dict(DEF); self.o.update(kw)
        self.a = Asm()

    def stamp(self, k):
        if not self.o["stamps"]: return
        a = self.a
        a("s_memtime s[4:5]\ns_waitcnt lgkmcnt(0)"); a.lg = []
        a(f"s_sub_u32 s{64+k}, s4, s98")
    def dump_stamps(self, tmpv):
        if not self.o["stamps"]: return
        a = self.a
        a("s_memrealtime s[4:5]\ns_waitcnt lgkmcnt(0)\ns_mov_b32 s78, s4\ns_mov_b32 s79, s99")
        a(f"s_lshl_b32 s6, s2, 3\ns_add_u32 s6, s6, s{WV}\ns_lshl_b32 s6, s6, 6\ns_add_u32 s6, s6, {WS_DBG}")
        a(f"v_mov_b32 v{tmpv}, 0")
        for k in range(16):
            a(f"v_mov_b32 v{tmpv+1}, s{64+k}")
            a(f"buffer_store_dword v{tmpv+1}, v{tmpv}, {sr(SWS,4)}, s6 offen offset:{4*k}")
        a("s_waitcnt vmcnt(0)")

    def poll(self, srd, soff, voffreg, tmp, cmpval, mask_s):
        a = self.a
        L = a.newlabel("L_poll"); D = a.newlabel("L_polld")
        a(f"s_mov_b32 s46, {self.o['spin']}")
        a.label(L)
        a(f"buffer_load_dword v{tmp}, v{voffreg}, {sr(srd,4)}, {soff} offen sc1")
        a("s_waitcnt vmcnt(0)")
        a(f"v_cmp_le_u32 vcc, {cmpval}, v{tmp}")
        a("s_nop 1")
        a(f"s_and_b64 s[44:45], vcc, {sr(mask_s,2)}")
        a(f"s_cmp_eq_u64 s[44:45], {sr(mask_s,2)}")
        a(f"s_cbranch_scc1 {D}")
        a(f"s_sleep {self.o['psleep']}\ns_sub_u32 s46, s46, 1\ns_cmp_lg_u32 s46, 0")
        a(f"s_cbranch_scc1 {L}")
        a.label(D)
        a.vm = []

    def advance(self, cnt, reg, step):
        self.a(f"""
        s_add_u32 s{cnt}, s{cnt}, 1
        s_add_u32 s{reg}, s{reg}, {step}
        s_cmp_eq_u32 s{cnt}, 7
        s_cselect_b32 s{cnt}, 0, s{cnt}
        s_cselect_b32 s46, {7*step}, 0
        s_sub_u32 s{reg}, s{reg}, s46
        """)

    def prologue(self):
        a, o = self.a, self.o
        a("s_cmp_ge_u32 s2, 256\ns_cbranch_scc1 L_end")
        if o["stamps"]:
            a("s_memtime s[98:99]\ns_memrealtime s[96:97]")
        a("s_load_dwordx16 s[64:79], s[0:1], 0\ns_load_dwordx8 s[80:87], s[0:1], 64")
        a(f"v_lshrrev_b32 v1, 6, v0\nv_and_b32 v{LANE}, 63, v0")
        a(f"s_and_b32 s44, s2, 7\ns_lshr_b32 s45, s2, 3")
        a(f"v_readfirstlane_b32 s{WV}, v1")
        nr, nc = {"A": (2, 16), "B": (4, 8), "C": (8, 4)}[o["mapping"]]
        lc = int(math.log2(nc)); lx = int(math.log2(16 // nc))
        a(f"s_lshr_b32 s{R_}, s44, {lx}\ns_mul_i32 s{R_}, s{R_}, {nr}\ns_lshr_b32 s46, s45, {lc}\ns_add_u32 s{R_}, s{R_}, s46")
        a(f"s_and_b32 s{C_}, s44, {(1 << lx) - 1}\ns_lshl_b32 s{C_}, s{C_}, {lc}\ns_and_b32 s46, s45, {nc-1}\ns_add_u32 s{C_}, s{C_}, s46")
        a(f"s_and_b32 s{W4}, s{WV}, 3")
        a(f"s_lshr_b32 s46, s{C_}, 3\ns_sub_u32 s{CF}, s{C_}, s46\ns_and_b32 s{SP}, s{C_}, 7")
        if o["rot"]:
            a(f"s_lshl_b32 s{ROT}, s{R_}, 1\ns_add_u32 s{ROT}, s{ROT}, s{C_}\ns_mul_i32 s46, s{ROT}, 37\ns_lshr_b32 s46, s46, 8\ns_mul_i32 s46, s46, 7\ns_sub_u32 s{ROT}, s{ROT}, s46")
        else:
            a(f"s_mov_b32 s{ROT}, 0")
        a("s_waitcnt lgkmcnt(0)")
        if o["stamps"]: a("s_mov_b32 s99, s96")
        def srd(d, p, n):
            a(f"s_mov_b32 s{d}, s{p}\ns_mov_b32 s{d+1}, s{p+1}\ns_mov_b32 s{d+2}, {n}\ns_mov_b32 s{d+3}, 0x20000")
        self.srd = srd
        srd(SX, 64, 1835008); srd(SWS, 86, WS_SIZE)
        a(f"s_cmp_ge_u32 s{WV}, 4\ns_cbranch_scc1 L_B")
        if o["stamps"]:
            for k in range(16): a(f"s_mov_b32 s{64+k}, 0")

    def b_prologue(self):
        a, o, srd = self.a, self.o, self.srd
        if o["codepf"]:
            a(f"""
            s_getpc_b64 s[44:45]
            L_pc:
            s_sub_u32 s44, s44, L_pc-{NAME}_kernel
            s_subb_u32 s45, s45, 0
            s_lshr_b32 s46, s2, 3
            s_and_b32 s46, s46, 15
            s_lshl_b32 s46, s46, 2
            s_add_u32 s46, s46, s{W4}
            s_lshl_b32 s46, s46, 10
            v_lshl_add_u32 v1, v{LANE}, 4, s46
            v_min_u32 v1, L_end-{NAME}_kernel-16, v1
            global_load_dwordx4 v[4:7], v1, s[44:45]
            """)
            a.vm.append("code")
        srd(SWQ, 66, 401408); srd(SWD, 80, 1605632); srd(SWO, 72, 401408); srd(SOUT, 82, 1835008); srd(SDBG, 84, 256)
        a(f"s_and_b32 s44, s{W4}, 1\ns_cmp_eq_u32 s44, 1")
        a("s_cselect_b32 s46, s78, s76\ns_cselect_b32 s47, s79, s77")
        a(f"s_cmp_eq_u32 s{C_}, 15")
        a("s_cselect_b32 s48, s70, s68\ns_cselect_b32 s49, s71, s69")
        a(f"s_cmp_eq_u32 s{SP}, 7")
        a(f"s_cselect_b32 s{SW1}, s48, s46\ns_cselect_b32 s{SW1+1}, s49, s47")
        a(f"s_cselect_b32 s{SW1+2}, 25088, s{SWD+2}\ns_mov_b32 s{SW1+3}, 0x20000")
        if o["stamps"]:
            for k in range(16): a(f"s_mov_b32 s{64+k}, 0")

    def a_p0(self):
        a, o = self.a, self.o
        L = LANE; T = 112
        vE, vO, aX, S0, S1, Q0, Q1, t0, t1, t2 = T, T+1, T+2, T+6, T+7, T+8, T+9, T+10, T+11, T+12
        a(f"""
        v_lshrrev_b32 v{t0}, 3, v{L}
        v_mul_u32_u24 v{t0}, 896, v{t0}
        v_and_b32 v{t1}, 7, v{L}
        v_lshrrev_b32 v{t2}, 4, v{L}
        v_xor_b32 v{t1}, v{t1}, v{t2}
        v_lshl_add_u32 v{vE}, v{t1}, 4, v{t0}
        v_xor_b32 v{t1}, 4, v{t1}
        v_lshl_add_u32 v{vO}, v{t1}, 4, v{t0}
        s_lshl_b32 s44, s{R_}, 2
        s_add_u32 s44, s44, s{W4}
        s_mul_i32 s44, s44, {32*896}
        s_mul_i32 s45, s{W4}, 28672
        s_lshl_b32 s46, s{ROT}, 7
        s_add_u32 s44, s44, s46
        s_mov_b32 s57, s{ROT}
        """)
        def issue(pp):
            for g in range(4):
                a(f"s_add_u32 m0, s45, {pp*4096 + g*1024}")
                a(f"s_add_u32 s46, s44, {g*7168}")
                a.vmem(f"buffer_load_dwordx4 v{vE if g % 2 == 0 else vO}, {sr(SX,4)}, s46 offen lds", ("x", pp))
            if pp < 6: self.advance(57, 44, 128)
            if pp == o["bar0"]:
                a("s_barrier")
                self.stamp(0)
        self.stamp(12)
        issue(0); issue(1)
        self.stamp(13)
        a(f"""
        v_and_b32 v{t0}, 31, v{L}
        v_lshrrev_b32 v{t1}, 5, v{L}
        v_bfe_u32 v{t2}, v{L}, 1, 3
        v_xor_b32 v{t1}, v{t1}, v{t2}
        v_lshlrev_b32 v{t1}, 4, v{t1}
        v_lshrrev_b32 v{t2}, 3, v{t0}
        v_lshl_add_u32 v{t1}, v{t2}, 10, v{t1}
        v_and_b32 v{t2}, 7, v{t0}
        v_lshl_add_u32 v{t1}, v{t2}, 7, v{t1}
        v_add_u32 v{aX}, s45, v{t1}
        v_xor_b32 v{aX+1}, 32, v{aX}
        v_xor_b32 v{aX+2}, 64, v{aX}
        v_xor_b32 v{aX+3}, 0x60, v{aX}
        v_mov_b32 v{S0}, 0
        v_mov_b32 v{S1}, 0
        v_mov_b32 v{Q0}, 0
        v_mov_b32 v{Q1}, 0
        s_mov_b32 s47, 0x3f803f80
        """)
        self.a_addr_regs()
        def stats(pp):
            for i in range(16):
                x = 16 * pp + i
                a(f"v_dot2_f32_bf16 v{S0 + i % 2}, v{x}, s47, v{S0 + i % 2}")
                a(f"v_dot2_f32_bf16 v{Q0 + i % 2}, v{x}, v{x}, v{Q0 + i % 2}")
        for pp in range(7):
            if pp + 2 < 7: issue(pp + 2)
            a.need_vm(("x", pp))
            for i in range(4):
                a.lds(f"ds_read_b128 {vr(16*pp + 4*i, 4)}, v{aX+i} offset:{pp*4096}", ("xr", pp))
            if pp > 0:
                a.need_lds(("xr", pp - 1)); stats(pp - 1)
        a.need_lds(("xr", 6)); stats(6)
        self.stamp(1)
        a(f"""
        s_nop 1
        v_add_f32 v{S0}, v{S0}, v{S1}
        v_add_f32 v{Q0}, v{Q0}, v{Q1}
        v_mov_b32 v{S1}, v{S0}
        v_mov_b32 v{Q1}, v{Q0}
        s_mov_b32 s48, 0xffff0000
        s_lshl_b32 s49, s{W4}, 11
        v_permlane32_swap_b32 v{S0}, v{S1}
        v_permlane32_swap_b32 v{Q0}, v{Q1}
        s_add_u32 s49, s49, {QREG}
        v_add_f32 v{S0}, v{S0}, v{S1}
        v_add_f32 v{Q0}, v{Q0}, v{Q1}
        v_mul_f32 v{M}, {hx(1/448)}, v{S0}
        v_mul_f32 v{Q0}, {hx(1/448)}, v{Q0}
        v_fma_f32 v{Q0}, -v{M}, v{M}, v{Q0}
        v_max_f32 v{Q0}, 0, v{Q0}
        """)
        K = 2 * math.log2(math.e) * math.sqrt(2 / math.pi)
        job = []
        if o["mimic"]:
            def rnd(r): return [f"v_cvt_pk_bf16_f32 v{r}, v{r}, v{r}", f"v_and_b32 v{r}, s48, v{r}"]
            run_job(a, rnd(M))
            job += [f"v_mov_b32 v{IR2}, v{Q0}"]
            run_job(a, job); job = []
            job += rnd(IR2) + [f"v_add_f32 v{IR2}, {hx(1e-5)}, v{IR2}"] + rnd(IR2)
            job += [f"v_sqrt_f32 v{IR2}, v{IR2}", "s_nop 0"] + rnd(IR2)
            job += [f"v_rcp_f32 v{RS}, v{IR2}", f"v_mul_f32 v{IR2}, v{IR2}, v{IR2}"]
        else:
            a(f"v_add_f32 v{IR2}, {hx(1e-5)}, v{Q0}")
            job += [f"v_rsq_f32 v{RS}, v{IR2}", "s_nop 0"]
        job += [f"v_mul_f32 v{QS}, {hx(28 ** -0.5 * math.log2(math.e))}, v{RS}",
                f"v_mul_f32 v{C1}, {hx(-K)}, v{RS}", f"v_mul_f32 v{C3}, v{RS}, v{RS}",
                f"v_mul_f32 v{C3}, v{C3}, v{C1}", f"v_mul_f32 v{C3}, {hx(0.044715)}, v{C3}"]
        self.rstd_job = job

    def a_addr_regs(self):
        a = self.a; L = LANE; t0, t1, t2, t3 = 124, 125, 126, 127
        a(f"""
        v_lshrrev_b32 v{t0}, 5, v{L}
        v_bfe_u32 v{t1}, v{L}, 2, 2
        v_bfe_u32 v{t2}, v{L}, 1, 1
        v_lshlrev_b32 v{AT}, 10, v{t0}
        v_lshl_add_u32 v{AT}, v{t1}, 7, v{AT}
        v_lshl_add_u32 v{AT}, v{t2}, 11, v{AT}
        v_xor_b32 v{t3}, v{t1}, v{t2}
        v_lshl_add_u32 v{AT}, v{t3}, 5, v{AT}
        v_bfe_u32 v{t3}, v{L}, 4, 1
        v_lshl_add_u32 v{AT}, v{t3}, 4, v{AT}
        v_and_b32 v{t2}, 1, v{L}
        v_lshl_add_u32 v{AT}, v{t2}, 3, v{AT}
        v_add_u32 v{AT}, {RING}, v{AT}
        v_xor_b32 v{AT+1}, 32, v{AT}
        v_xor_b32 v{AT+2}, 64, v{AT}
        v_xor_b32 v{AT+3}, 0x60, v{AT}
        v_lshlrev_b32 v{AQ}, 9, v{t0}
        v_lshl_add_u32 v{AQ}, v{t1}, 6, v{AQ}
        v_lshl_add_u32 v{AQ}, v{t3}, 5, v{AQ}
        v_and_b32 v{t2}, 3, v{L}
        v_lshl_add_u32 v{AQ}, v{t2}, 3, v{AQ}
        v_add_u32 v{AQ}, {RING}, v{AQ}
        v_lshlrev_b32 v{L16}, 4, v{L}
        """)

    def center_job(self, ks, temps):
        out = []
        ta, tb, tc, td = temps
        for i in (0, 2):
            x, y = 4 * ks + i, 4 * ks + i + 1
            out += [f"v_lshlrev_b32 v{ta}, 16, v{x}", f"v_and_b32 v{tb}, s48, v{x}",
                    f"v_lshlrev_b32 v{tc}, 16, v{y}", f"v_and_b32 v{td}, s48, v{y}",
                    f"v_sub_f32 v{ta}, v{ta}, v{M}", f"v_sub_f32 v{tb}, v{tb}, v{M}",
                    f"v_sub_f32 v{tc}, v{tc}, v{M}", f"v_sub_f32 v{td}, v{td}, v{M}",
                    f"v_cvt_pk_bf16_f32 v{x}, v{ta}, v{tb}", f"v_cvt_pk_bf16_f32 v{y}, v{tc}, v{td}"]
        return out

    def q_job(self, aq):
        a = self.a
        out = [f"v_mul_f32 v{aq+i}, v{QS}, v{aq+i}" for i in range(16)]
        out += [f"v_cvt_pk_bf16_f32 v{aq+k}, v{aq+2*k}, v{aq+2*k+1}" for k in range(8)]
        out.append(f"v_add_u32 v{aq+8}, s49, v{L16}")
        out.append(lambda: a.lds(f"ds_write_b128 v{aq+8}, {vr(aq,4)}", "Qw"))
        out.append(lambda: a.lds(f"ds_write_b128 v{aq+8}, {vr(aq+4,4)} offset:1024", "Qw"))
        return out

    def gelu_job(self, a0, t):
        a = self.a; ta, tb = TA, TB
        out = []
        for h in (0, 8):
            for i in (0, 2):
                ga, gb, ua, ub = a0+h+i, a0+h+i+1, a0+h+4+i, a0+h+5+i
                out += [f"v_mul_f32 v{ta}, v{ga}, v{ga}", f"v_mul_f32 v{tb}, v{gb}, v{gb}",
                        f"v_fma_f32 v{ta}, v{ta}, v{C3}, v{C1}", f"v_fma_f32 v{tb}, v{tb}, v{C3}, v{C1}",
                        f"v_mul_f32 v{ta}, v{ta}, v{ga}", f"v_mul_f32 v{tb}, v{tb}, v{gb}",
                        f"v_exp_f32 v{ta}, v{ta}", f"v_exp_f32 v{tb}, v{tb}",
                        f"v_mul_f32 v{ua}, v{ga}, v{ua}", f"v_mul_f32 v{ub}, v{gb}, v{ub}",
                        f"v_fma_f32 v{ta}, v{ta}, v{IR2}, v{IR2}", f"v_fma_f32 v{tb}, v{tb}, v{IR2}, v{IR2}",
                        f"v_rcp_f32 v{ta}, v{ta}", f"v_rcp_f32 v{tb}, v{tb}",
                        f"v_mul_f32 v{ua}, v{ua}, v{ta}", f"v_mul_f32 v{ub}, v{ub}, v{tb}"]
            out += [f"v_cvt_pk_bf16_f32 v{a0 + h//4}, v{a0+h+4}, v{a0+h+5}",
                    f"v_cvt_pk_bf16_f32 v{a0 + h//4 + 1}, v{a0+h+6}, v{a0+h+7}"]
        sreg = 50 + t // 4
        out.append(lambda: a.vmem(f"buffer_store_dwordx4 {vr(a0,4)}, v{L16}, {sr(SWS,4)}, s{sreg} offen offset:{(t%4)*1024}{self.o['stsc']}", "hst"))
        return out

    def read_sched(self, N, pool):
        LA = self.o["LA"]
        busy = {}; out = []; nxt = 0
        for gap in range(-1, N):
            for r in [r for r, m in busy.items() if m <= gap]: del busy[r]
            k = 0
            while nxt < N and nxt - gap <= LA and (gap == -1 or k < 2):
                free = [r for r, lo, hi in pool if r not in busy and lo <= gap and nxt <= hi]
                if not free: break
                busy[free[0]] = nxt; out.append((gap, free[0])); nxt += 1; k += 1
            assert nxt > gap + 1 or nxt == N, ("no fragment buffer", gap)
        return out

    def plan(self, mseq, chunk_of, order, barpos, rs):
        N = len(mseq)
        idx = {c: i for i, c in enumerate(order)}
        last = {}
        for n, m in enumerate(mseq): last[chunk_of(m)] = n
        need = []
        for j, p in enumerate(barpos):
            e = barpos[j + 1] if j + 1 < len(barpos) else N
            lo = -1 if j == 0 else p
            mx = max([idx[chunk_of(mseq[n])] for n in range(N) if lo <= rs[n][0] < e] or [-1])
            need.append(max(mx, need[-1] if need else -1))
        rel = {}
        for c, n in last.items():
            k = [j for j, p in enumerate(barpos) if p > n]
            rel[idx[c]] = k[0] if k else len(barpos)
        return need, rel

    def mfma_stream(self, mseq, barpos, rs, read_fn, mfma_fn, jobs, bud, pre_bar=None, hook=None):
        a, o = self.a, self.o
        N = len(mseq)
        jobs = [[list(j[0]), j[1], j[2]] for j in jobs]
        def emit(x):
            if o["nofill"] and not callable(x) and x.startswith("v_"): return 1
            if callable(x): x(); return 1
            a(x); return 2 if x.startswith(("v_exp", "v_rcp", "v_sqrt", "v_rsq")) else 1
        def run(gap, bud):
            c = 0
            while jobs:
                j = jobs[0]
                if not j[0]: jobs.pop(0); continue
                must = any(k[0] and k[2] - 2 <= gap for k in jobs)
                if j[1] > gap:
                    assert not must, ("job deadline infeasible", gap, j[1], j[2]); break
                if c >= bud and not must: break
                c += emit(j[0].pop(0))
        def reads(gap):
            k = 0
            for n in range(N):
                if rs[n][0] == gap:
                    if not o["noread"]: read_fn(mseq[n], rs[n][1], n)
                    k += 1
            return k
        run(-1, 0)
        for n in range(N):
            if n in barpos:
                if pre_bar: pre_bar(barpos.index(n))
                if not (o["nobar"] and 0 < barpos.index(n) < len(barpos) - 1): a("s_barrier")
                if n == 0: reads(-1)
            if hook: hook(n)
            tags = [("w", n)]
            if n % o["wbatch"] == 0:
                tags += [("w", n + i) for i in range(1, o["wbatch"]) if n + i < N and rs[n + i][0] < n - 1]
            a.need_lds(*tags)
            mfma_fn(mseq[n], rs[n][1])
            k = reads(n)
            run(n, bud - 2 * (k - 1))
        return jobs

    def f_sched(self):
        o = self.o
        mseq = [(t, ks) for ks in range(28) for t in ("q", 0, 1, 2, 3)]
        nA = len(mseq)
        mseq += [(t, ks) for ks in range(8) for t in (4, 5)]
        mseq += [(6, ks) for ks in range(8)]
        mseq += [(t, ks) for ks in range(8, 12) for t in (4, 5, 6)]
        mseq += [(7, ks) for ks in range(12)]
        mseq += [(t, ks) for ks in range(12, 24) for t in (4, 5, 6, 7)]
        mseq += [(t, ks) for t in (4, 5, 6, 7) for ks in range(24, 28)]
        order = []
        for g in range(7): order += [("Q", g)] + [("A", 4*g + i) for i in range(4)]
        order += [("B", ks) for ks in range(28)]
        def chunk_of(m):
            t, ks = m
            return ("Q", ks // 4) if t == "q" else ("A", ks) if t < 4 else ("B", ks)
        barpos = list(range(0, nA, o["barA"])) + list(range(nA, len(mseq) - 12, o["barB"]))
        n6 = mseq.index((6, 0))
        pool = [(r, -1, BIG) for r in (224, 228, 232, 236)]
        pool += [(r, -1, nA - 1) for r in (P[6], P[6] + 4, P[6] + 8, P[6] + 12)]
        pool += [(AQ, n6, BIG)]
        pool += [(4 * k, mseq.index((7, k)), barpos[-1] - 1) for k in range(3)]
        rs = self.read_sched(len(mseq), pool)
        return mseq, chunk_of, order, barpos, rs

    def a_p1_F(self):
        a, o = self.a, self.o
        mseq, chunk_of, order, barpos, rs = self.f_sched()
        slot = {c: (i + 4) % 16 for i, c in enumerate(order)}
        acc = {"q": P[0], 0: P[1], 1: P[2], 2: P[3], 3: P[4], 4: P[5], 5: P[6], 6: P[0], 7: P[1]}
        sjob = f"""
        s_lshl_b32 s50, s{R_}, 2
        s_add_u32 s50, s50, s{W4}
        s_mul_i32 s50, s50, 112
        s_lshl_b32 s51, s{CF}, 3
        s_add_u32 s50, s50, s51
        s_lshl_b32 s50, s50, 10
        s_add_u32 s50, s50, {WS_H}
        s_add_u32 s51, s50, 4096
        """.strip().split("\n")
        first = {}; lastm = {}
        for n, (t, ks) in enumerate(mseq):
            first.setdefault(t, n); lastm[t] = n; first.setdefault(("x", ks), n)
        def read_fn(m, r, n):
            t, ks = m; b = slot[chunk_of(m)] * 4096
            if t == "q":
                ad, o0, o1 = AQ, b + (ks % 4) * 1024, b + (ks % 4) * 1024 + 256
            else:
                ad, o0, o1 = AT + t % 4, b, b + 512
            a.lds(f"ds_read_b64_tr_b16 {vr(r,2)}, v{ad} offset:{o0}", ("w", n))
            a.lds(f"ds_read_b64_tr_b16 {vr(r+2,2)}, v{ad} offset:{o1}", ("w", n))
        def mfma_fn(m, r):
            t, ks = m; d = acc[t]
            c = "0" if ks == 0 else vr(d, 16)
            a(f"v_mfma_f32_32x32x16_bf16 {vr(d,16)}, {vr(r,4)}, {vr(4*ks,4)}, {c}")
        jobs = [[self.center_job(ks, (P[5], P[5]+1, P[5]+2, P[5]+3)), -1, first[("x", ks)]] for ks in range(28)]
        jobs.append([self.rstd_job + [x.strip() for x in sjob], -1, first[6]])
        jobs.append([self.q_job(acc["q"]), lastm["q"] + 3, first[6]])
        jobs.append([self.gelu_job(acc[0], 0), lastm[0] + 3, first[7]])
        for t in (1, 2, 3): jobs.append([self.gelu_job(acc[t], t), lastm[t] + 3, BIG])
        pf = self.att_prefetch()
        for t in (4, 5, 6, 7):
            g = self.gelu_job(acc[t], t); k = (len(pf) + 7 - t) // (8 - t); mine, pf = pf[:k], pf[k:]
            out = []; step = (len(g) - 1) / len(mine)
            for i, x in enumerate(mine): out += [x] + g[round(i * step):round((i + 1) * step)]
            out += g[round(len(mine) * step):]
            assert len(out) == len(g) + len(mine)
            jobs.append([out, max(lastm[t] + 3, barpos[-1]), BIG])
        def pre_bar(j):
            if j == len(barpos) - 1: a.need_lds("Qw")
        def hook(n):
            if n == 140: self.stamp(7)
            if n == 0: self.stamp(0)
        rest = self.mfma_stream(mseq, barpos, rs, read_fn, mfma_fn, jobs, o["bud"], pre_bar, hook)
        self.stamp(2)
        for j in rest: run_job(a, j[0])
        self.stamp(3)

    def b_p1_F(self):
        a, o = self.a, self.o
        mseq, chunk_of, order, barpos, rs = self.f_sched()
        need, rel = self.plan(mseq, chunk_of, order, barpos, rs)
        L = LANE; vW, vQ = 240, 241
        a(f"""
        v_lshrrev_b32 v1, 3, v{L}
        v_mul_u32_u24 v{vW}, 3584, v1
        v_and_b32 v1, 3, v1
        s_and_b32 s44, s{W4}, 1
        v_xor_b32 v1, s44, v1
        v_bfe_u32 v2, v{L}, 1, 2
        v_xor_b32 v1, v1, v2
        v_lshl_add_u32 v{vW}, v1, 5, v{vW}
        v_and_b32 v1, 1, v{L}
        v_lshl_add_u32 v{vW}, v1, 4, v{vW}
        v_lshrrev_b32 v1, 2, v{L}
        v_mul_u32_u24 v{vQ}, 896, v1
        v_and_b32 v1, 3, v{L}
        v_lshl_add_u32 v{vQ}, v1, 4, v{vQ}
        s_lshr_b32 s45, s{W4}, 1
        s_mul_i32 s50, s45, {8*3584}
        s_lshl_b32 s46, s{CF}, 8
        s_add_u32 s50, s50, s46
        s_mul_i32 s46, s{ROT}, {64*3584}
        s_add_u32 s50, s50, s46
        s_lshl_b32 s51, s44, 11
        s_lshl_b32 s45, s45, 10
        s_add_u32 s51, s51, s45
        s_add_u32 s51, s51, {RING}
        s_mul_i32 s52, s{W4}, {16*896}
        s_mul_i32 s46, s{C_}, 56
        s_add_u32 s52, s52, s46
        s_mul_i32 s46, s{ROT}, {64*896}
        s_add_u32 s52, s52, s46
        s_lshl_b32 s53, s{W4}, 10
        s_add_u32 s53, s53, {RING}
        s_mov_b32 s96, s{ROT}
        s_mov_b32 s97, s{ROT}
        """)
        def issue(i):
            kind, k = order[i]; sl = ((i + 4) % 16) * 4096
            if kind == "Q":
                a(f"s_add_u32 m0, s53, {sl}\ns_nop 0")
                a.vmem(f"buffer_load_dwordx4 v{vQ}, {sr(SWQ,4)}, s52 offen lds", i)
                if k < 6: self.advance(97, 52, 64 * 896)
            else:
                a(f"s_add_u32 m0, s51, {sl}\ns_add_u32 s46, s50, {(k % 4)*16*3584 + (128 if kind == 'B' else 0)}")
                a.vmem(f"buffer_load_dwordx4 v{vW}, {sr(SW1,4)}, s46 offen lds", i)
                if k % 4 == 3 and i + 1 < len(order): self.advance(96, 50, 64 * 3584)
        nxt = o["npre0"]
        for i in range(nxt): issue(i)
        self.b_wsetup()
        a("s_waitcnt lgkmcnt(0)\ns_barrier")
        self.wnext = 0; self.issued = set()
        for j in range(len(barpos)):
            while nxt < len(order):
                if nxt >= 16: ok = rel[nxt - 16] <= j - 1
                elif nxt >= 12: ok = j >= 1
                else: ok = True
                if not ok: break
                issue(nxt); nxt += 1
            assert nxt > need[j], (j, nxt, need[j])
            if o["wearly"] and j >= 2 and j % 2 == 0 and self.wnext < NWS:
                self.wdma(self.wnext); self.wnext += 1
            if j == len(barpos) - 1:
                assert nxt == len(order)
                a(f"s_cmp_lg_u32 s{W4}, 0\ns_cbranch_scc1 L_nokvp")
                a("v_mov_b32 v1, 0\ns_mov_b64 s[54:55], 1\ns_mov_b64 exec, 1")
                self.poll(SDBG, "0", 1, 2, 32, 54)
                a("s_mov_b64 exec, -1")
                a.label("L_nokvp")
                a.drain_vm()
            else:
                a.need_vm(need[j])
            if not (o["nobar"] and 0 < j < len(barpos) - 1): a("s_barrier")

    def s_sched(self):
        mseq = [("k", ks) for ks in range(28)] + [("q", ks) for ks in range(28)]
        order = [("K", g) for g in range(7)] + [("Q", g) for g in range(7)]
        def chunk_of(m): return ("Q" if m[0] == "q" else "K", m[1] // 4)
        return mseq, chunk_of, order

    def s_tile(self, t, d, swap, slot):
        a = self.a
        fr = [224, 228, 232, 236, P[6], P[6] + 4, P[6] + 8]
        def rd(ks):
            b = slot[("Q" if t == "q" else "K", ks // 4)] * 4096 + (ks % 4) * 1024; r = fr[ks % 7]
            a.lds(f"ds_read_b64_tr_b16 {vr(r,2)}, v{AQ} offset:{b}", ("w", ks))
            a.lds(f"ds_read_b64_tr_b16 {vr(r+2,2)}, v{AQ} offset:{b+256}", ("w", ks))
        for ks in range(6): rd(ks)
        for ks in range(28):
            a.need_lds(("w", ks)); r = fr[ks % 7]
            x, y = (vr(4*ks, 4), vr(r, 4)) if swap else (vr(r, 4), vr(4*ks, 4))
            a(f"v_mfma_f32_32x32x16_bf16 {vr(d,16)}, {x}, {y}, {'0' if ks == 0 else vr(d,16)}")
            if ks + 6 < 28: rd(ks + 6)

    def a_p1_S(self):
        a, o = self.a, self.o
        mseq, chunk_of, order = self.s_sched()
        slot = {c: (i + 4) % 16 for i, c in enumerate(order)}
        acc = {"q": P[0], "k": P[1], "v": P[2]}
        NM = P[5] + 8
        a(f"s_mov_b32 s52, 0x00003f80\ns_mov_b32 s53, 0x3f800000\nv_sub_f32 v{NM}, 0, v{M}")
        for x in range(0, 112, 4):
            for i in range(4):
                a(f"v_dot2_f32_bf16 v{P[5]+2*i}, v{x+i}, s52, v{NM}\nv_dot2_f32_bf16 v{P[5]+2*i+1}, v{x+i}, s53, v{NM}")
            if x == 0: run_job(a, self.rstd_job)
            else: a("s_nop 0")
            for i in range(4):
                a(f"v_cvt_pk_bf16_f32 v{x+i}, v{P[5]+2*i}, v{P[5]+2*i+1}")
        a("s_barrier")
        self.stamp(2)
        L = LANE; t0, t1, t2 = P[5], P[5] + 1, P[5] + 2
        a(f"""
        s_lshl_b32 s50, s{R_}, 2
        s_add_u32 s50, s50, s{W4}
        s_lshl_b32 s50, s50, 12
        s_cmp_eq_u32 s{C_}, 15
        s_cbranch_scc1 L_vepi
        """)
        k = acc["k"]
        self.s_tile("k", k, False, slot)
        a(f"""
        v_cmp_gt_u32 vcc, 32, v{L}
        v_bfe_u32 v{t1}, v{L}, 2, 1
        v_bfe_u32 v{t2}, v{L}, 3, 1
        v_cndmask_b32 v{t0}, 0, v{RS}, vcc
        v_xor_b32 v{t1}, v{t1}, v{t2}
        v_mul_u32_u24 v{t1}, 12, v{t1}
        v_xor_b32 v{t1}, v{t1}, v{L}
        v_lshlrev_b32 v{t1}, 4, v{t1}
        """)
        for i in range(16): a(f"v_mul_f32 v{k+i}, v{RS if i < 12 else t0}, v{k+i}")
        for i in range(8): a(f"v_cvt_pk_bf16_f32 v{k+i}, v{k+2*i}, v{k+2*i+1}")
        a(f"buffer_store_dwordx4 {vr(k,4)}, v{t1}, {sr(SWS,4)}, s50 offen sc1")
        a(f"buffer_store_dwordx4 {vr(k+4,4)}, v{t1}, {sr(SWS,4)}, s50 offen offset:1024 sc1")
        a("s_branch L_kvdone")
        a.label("L_vepi")
        v = acc["v"]; rr = P[3]
        a.reset()
        a(f"""
        s_lshl_b32 s51, s{W4}, 7
        s_add_u32 s51, s51, {RREG}
        v_and_b32 v{t0}, 31, v{L}
        v_lshl_add_u32 v{t1}, v{t0}, 2, s51
        ds_write_b32 v{t1}, v{RS}
        v_lshrrev_b32 v{t1}, 5, v{L}
        v_lshl_add_u32 v{t1}, v{t1}, 4, s51
        s_waitcnt lgkmcnt(0)
        """)
        for j in range(4): a(f"ds_read_b128 {vr(rr+4*j,4)}, v{t1} offset:{32*j}")
        a(f"""
        v_cmp_eq_u32 vcc, 28, v{t0}
        v_mov_b32 v{t2}, 0x3f803f80
        s_nop 0
        v_cndmask_b32 v{t2}, 0, v{t2}, vcc
        v_cmp_gt_u32 vcc, 28, v{t0}
        """)
        self.s_tile("k", v, True, slot)
        for i in range(16): a(f"v_mul_f32 v{v+i}, v{rr+i}, v{v+i}")
        for i in range(8): a(f"v_cvt_pk_bf16_f32 v{v+i}, v{v+2*i}, v{v+2*i+1}")
        for i in range(8): a(f"v_cndmask_b32 v{v+i}, v{t2}, v{v+i}, vcc")
        a(f"buffer_store_dwordx4 {vr(v,4)}, v{L16}, {sr(SWS,4)}, s50 offen offset:2048 sc1")
        a(f"buffer_store_dwordx4 {vr(v+4,4)}, v{L16}, {sr(SWS,4)}, s50 offen offset:3072 sc1")
        a.label("L_kvdone")
        a.reset()
        a("s_waitcnt vmcnt(0)")
        a("s_barrier")
        self.stamp(3)
        self.s_tile("q", acc["q"], False, slot)
        run_job(a, self.q_job(acc["q"]))
        a("s_waitcnt lgkmcnt(0)"); a.reset()
        a("s_barrier")
        run_job(a, self.att_prefetch())
        a("s_waitcnt vmcnt(0)")

    def b_p1_S(self):
        a, o = self.a, self.o
        mseq, chunk_of, order = self.s_sched()
        L = LANE; vK, vQ = 240, 241
        a(f"""
        v_lshrrev_b32 v1, 2, v{L}
        v_mul_u32_u24 v{vQ}, 896, v1
        v_mul_u32_u24 v{vK}, 56, v1
        v_and_b32 v1, 3, v{L}
        v_lshl_add_u32 v{vQ}, v1, 4, v{vQ}
        v_lshl_add_u32 v{vK}, v1, 4, v{vK}
        s_mul_i32 s50, s{W4}, {16*56}
        s_mul_i32 s46, s{ROT}, {64*56}
        s_add_u32 s50, s50, s46
        s_mul_i32 s52, s{W4}, {16*896}
        s_mul_i32 s46, s{C_}, 56
        s_add_u32 s52, s52, s46
        s_mul_i32 s46, s{ROT}, {64*896}
        s_add_u32 s52, s52, s46
        s_lshl_b32 s53, s{W4}, 10
        s_add_u32 s53, s53, {RING}
        s_mov_b32 s96, s{ROT}
        s_mov_b32 s97, s{ROT}
        v_mov_b32 v8, 0
        v_mov_b32 v9, 0
        v_lshlrev_b32 v1, 3, v{L}
        s_lshl_b32 s46, s{R_}, 11
        s_lshl_b32 s47, s{W4}, 9
        s_add_u32 s46, s46, s47
        s_add_u32 s46, s46, {WS_FLG}
        """)
        a.vmem(f"buffer_store_dwordx2 v[8:9], v1, {sr(SWS,4)}, s46 offen sc1", "clr")
        def issue(i):
            kind, k = order[i]; sl = ((i + 4) % 16) * 4096
            a(f"s_add_u32 m0, s53, {sl}\ns_nop 0")
            if kind == "Q":
                a.vmem(f"buffer_load_dwordx4 v{vQ}, {sr(SWQ,4)}, s52 offen lds", i)
                if k < 6: self.advance(97, 52, 64 * 896)
            else:
                a.vmem(f"buffer_load_dwordx4 v{vK}, {sr(SW1,4)}, s50 offen lds", i)
                if k < 6: self.advance(96, 50, 64 * 56)
        a("s_barrier")
        for i in range(12): issue(i)
        a.need_vm(6)
        a("s_barrier")
        issue(12); issue(13)
        a.drain_vm()
        a("s_barrier")
        a(f"""
        s_cmp_lg_u32 s{W4}, 0
        s_cbranch_scc1 L_noarr
        v_mov_b32 v1, 0
        v_mov_b32 v2, 1
        s_mov_b64 exec, 1
        buffer_atomic_add v2, v1, {sr(SDBG,4)}, 0 offen sc1
        s_mov_b64 s[54:55], 1
        s_sleep 16
        """)
        self.poll(SDBG, "0", 1, 2, 32, 54)
        a("s_mov_b64 exec, -1")
        a.label("L_noarr")
        a("s_barrier")
        self.dump_stamps(4)
        a("s_endpgm")

    KV = [0, 16, 32, 48]; QF = 64; OB = [144, 160, 176, 96]; SB = [192, 208, 112, 128]
    VKV = 241
    def kvload(self, T, part):
        a = self.a; s = 52 if part == 0 else 56; out = []
        for i in range(2):
            out.append(lambda i=i: a.vmem(f"buffer_load_dwordx4 {vr(self.KV[T % 4] + 8*part + 4*i, 4)}, v{self.VKV}, {sr(SWS,4)}, s{s} offen offset:{2048*part + 1024*i}{self.o['kvsc']}", ("kv", T, part)))
        if part == 0: out += ["s_mov_b32 s56, s52", "s_add_u32 s52, s52, 4096", "s_and_b32 s52, s52, 0xffff"]
        return out
    def att_prefetch(self):
        a = self.a; out = []
        out += [f"s_lshl_b32 s53, s{W4}, 16", f"v_add_u32 v{TC}, s53, v{L16}"]
        if self.o["kvrot"]: out += ["s_lshr_b32 s52, s2, 3", "s_lshl_b32 s52, s52, 12", "s_and_b32 s52, s52, 0xffff"]
        else: out += ["s_mov_b32 s52, 0"]
        sv = self.VKV; self.VKV = TC
        for T in (0, 1, 2, 3):
            for part in (0, 1):
                if (T, part) == (3, 1): continue
                for x in self.kvload(T, part):
                    out.append(x if not callable(x) else (lambda x=x: self._with_vkv(TC, x)))
        self.VKV = sv
        for j in range(4):
            out += [f"s_add_u32 s53, s{W4}, {j + 1}", "s_and_b32 s53, s53, 3", "s_lshl_b32 s53, s53, 11", f"s_add_u32 s53, s53, {QREG}",
                    f"v_add_u32 v{TC}, s53, v{L16}"]
            for i in range(2):
                out.append(lambda j=j, i=i: a.lds(f"ds_read_b128 {vr(self.QF + 8*j + 4*i, 4)}, v{TC} offset:{1024*i}", "Qr"))
        return out
    def _with_vkv(self, r, f):
        sv = self.VKV; self.VKV = r; f(); self.VKV = sv

    def attention(self):
        a, o = self.a, self.o
        KV, QF, OB, SB = self.KV, self.QF, self.OB, self.SB
        IDX, Z, ZERO, ONE = 240, 224, 242, 243
        a(f"s_lshl_b32 s53, s{W4}, 16\nv_add_u32 v{self.VKV}, s53, v{L16}")
        a(f"v_mov_b32 v{IDX}, 0xdddddddd")
        for i in range(4): a(f"v_mov_b32 v{Z+i}, 0")
        a(f"""
        v_mov_b32 v{ZERO}, 0
        v_mov_b32 v{ONE}, 1
        """)
        for j in range(4): a(f"v_mfma_f32_32x32x16_bf16 {vr(OB[j],16)}, {vr(Z,4)}, {vr(Z,4)}, 0")
        a("s_waitcnt lgkmcnt(0)"); a.lg = []
        a.need_vm(("kv", 0, 0))
        def qk(T, q, i):
            c = "0" if i == 0 else vr(SB[q], 16)
            a(f"v_mfma_f32_32x32x16_bf16 {vr(SB[q],16)}, {vr(KV[T%4] + 4*i, 4)}, {vr(QF + 8*q + 4*i, 4)}, {c}")
        def pv(T, q, i):
            a(f"v_smfmac_f32_32x32x32_bf16 {vr(OB[q],16)}, {vr(KV[T%4] + 8 + 4*i, 4)}, {vr(SB[q] + 8*i, 8)}, v{IDX}")
        def ex(q, k):
            for i in range(4 * k, 4 * k + 4): a(f"v_exp_f32 v{SB[q]+i}, v{SB[q]+i}")
        RB = RING
        def owrite(j):
            a(f"s_add_u32 s53, s{W4}, {j + 1}\ns_and_b32 s53, s53, 3\ns_mul_i32 s53, s53, 12288\ns_add_u32 s53, s53, {RB + j*4096}")
            a(f"v_add_u32 v{TC}, s53, v{L16}")
            for i in range(4): a(f"ds_write_b128 v{TC}, {vr(OB[j] + 4*i, 4)} offset:{1024*i}")
        qk(0, 0, 0); qk(0, 0, 1)
        self.stamp(4)
        for T in range(16):
            if T in (4, 8): self.stamp({4: 10, 8: 11}[T])
            for q in range(4):
                Tn, qn = (T, q + 1) if q < 3 else (T + 1, 0)
                Tp, qp = (T, q - 1) if q > 0 else (T - 1, 3)
                if Tn < 16:
                    if q == 3: a.need_vm(("kv", Tn, 0))
                    qk(Tn, qn, 0)
                if q == 3 and T + 4 < 16: run_job(a, self.kvload(T + 4, 0))
                if q == 3 and T == 3:
                    a("s_barrier")
                if q == 1 and T + 3 < 16: run_job(a, self.kvload(T + 3, 1))
                ex(q, 0)
                if T == 15 and q >= 2: owrite(q - 2)
                if Tn < 16: qk(Tn, qn, 1)
                ex(q, 1)
                if Tp >= 0: pv(Tp, qp, 1)
                ex(q, 2)
                if q == 0: a.need_vm(("kv", T, 1))
                pv(T, q, 0)
                ex(q, 3)
        owrite(2)
        pv(15, 3, 1)
        self.stamp(5)
        a(f"s_mul_i32 s53, s{W4}, 12288\ns_add_u32 s53, s53, {RB}\nv_add_u32 v{TC}, s53, v{L16}")
        a(f"""
        s_lshl_b32 s55, s{R_}, 2
        s_add_u32 s55, s55, s{W4}
        s_lshl_b32 s55, s55, 5
        s_lshl_b32 s53, s{C_}, 1
        s_add_u32 s55, s55, s53
        s_lshl_b32 s55, s55, 10
        s_add_u32 s55, s55, {WS_O}
        s_lshl_b32 s54, s{R_}, 11
        s_add_u32 s54, s54, {WS_FLG + 1024}
        s_lshr_b32 s53, s{W4}, 1
        s_lshl_b32 s53, s53, 9
        s_add_u32 s54, s54, s53
        s_lshr_b32 s53, s{C_}, 2
        s_lshl_b32 s53, s53, 7
        s_add_u32 s54, s54, s53
        s_and_b32 s53, s{C_}, 3
        s_lshl_b32 s53, s53, 3
        s_add_u32 s54, s54, s53
        s_and_b32 s53, s{W4}, 1
        s_lshl_b32 s53, s53, 2
        s_add_u32 s54, s54, s53
        """)
        a("s_waitcnt lgkmcnt(0)\ns_barrier")
        self.stamp(8)
        for j in range(3):
            for i in range(4): a.lds(f"ds_read_b128 {vr(SB[j] + 4*i, 4)}, v{TC} offset:{4096*j + 1024*i}", ("or", j))
        O = OB[3]
        for j in range(3):
            a.need_lds(("or", j))
            for i in range(16): a(f"v_add_f32 v{O+i}, v{O+i}, v{SB[j]+i}")
        t1, t2 = TA, TB
        a(f"""
        v_mov_b32 v{t1}, v{O+12}
        v_mov_b32 v{t2}, v{O+12}
        s_nop 1
        v_permlane32_swap_b32 v{t1}, v{t2}
        s_nop 1
        v_cmp_le_f32 vcc, {hx(2.0**-60)}, v{t2}
        v_mov_b32 v{t1}, {hx(2.0**60)}
        v_cmp_ge_f32 s[44:45], v{t1}, v{t2}
        s_nop 1
        s_and_b64 s[44:45], s[44:45], vcc
        s_cmp_eq_u64 s[44:45], -1
        """)
        a("s_cbranch_scc1 L_slow" if o["force_slow"] else "s_cbranch_scc0 L_slow")
        a.label("L_norm")
        a(f"""
        v_rcp_f32 v{t2}, v{t2}
        v_cmp_gt_u32 vcc, 32, v{LANE}
        s_nop 1
        v_cndmask_b32 v{t1}, 0, v{t2}, vcc
        """)
        for i in range(16): a(f"v_mul_f32 v{O+i}, v{t2 if i < 12 else t1}, v{O+i}")
        for i in range(8): a(f"v_cvt_pk_bf16_f32 v{O+i}, v{O+2*i}, v{O+2*i+1}")
        a(f"buffer_store_dwordx4 {vr(O,4)}, v{L16}, {sr(SWS,4)}, s55 offen sc1")
        a(f"buffer_store_dwordx4 {vr(O+4,4)}, v{L16}, {sr(SWS,4)}, s55 offen offset:1024 sc1")
        self.stamp(9)
        a("s_waitcnt vmcnt(0)")
        a(f"buffer_store_dword v{ONE}, v{ZERO}, {sr(SWS,4)}, s54 offen sc1")
        self.stamp(6)
        self.dump_stamps(4)
        a("s_endpgm")
        S = SB[3]; MX = TC
        a.label("L_slow")
        a(f"v_mov_b32 v{MX}, 0xff800000\ns_mov_b32 s52, 0")
        a.label("L_slow1")
        for i in range(2): a(f"buffer_load_dwordx4 {vr(4*i,4)}, v{L16}, {sr(SWS,4)}, s52 offen offset:{i*1024} sc1")
        a("s_waitcnt vmcnt(0)")
        qk(0, 3, 0); qk(0, 3, 1)
        a("s_nop 7\ns_nop 3")
        for i in range(0, 16, 2): a(f"v_max3_f32 v{MX}, v{MX}, v{S+i}, v{S+i+1}")
        a(f"s_add_u32 s52, s52, 4096\ns_cmp_lt_u32 s52, {64*4096}\ns_cbranch_scc1 L_slow1")
        a(f"v_mov_b32 v{t1}, v{MX}\ns_nop 1\nv_permlane32_swap_b32 v{MX}, v{t1}\ns_nop 1\nv_max_f32 v{MX}, v{MX}, v{t1}")
        for i in range(16): a(f"v_mov_b32 v{O+i}, 0")
        a("s_mov_b32 s52, 0")
        a.label("L_slow2")
        for i in range(4): a(f"buffer_load_dwordx4 {vr(4*i,4)}, v{L16}, {sr(SWS,4)}, s52 offen offset:{i*1024} sc1")
        a("s_waitcnt vmcnt(0)")
        qk(0, 3, 0); qk(0, 3, 1)
        a("s_nop 7\ns_nop 3")
        for i in range(16): a(f"v_sub_f32 v{S+i}, v{S+i}, v{MX}")
        for i in range(16): a(f"v_exp_f32 v{S+i}, v{S+i}")
        a("s_nop 1")
        pv(0, 3, 0); pv(0, 3, 1)
        a(f"s_add_u32 s52, s52, 4096\ns_cmp_lt_u32 s52, {64*4096}\ns_cbranch_scc1 L_slow2")
        a(f"""
        s_nop 7
        s_nop 3
        v_mov_b32 v{t1}, v{O+12}
        v_mov_b32 v{t2}, v{O+12}
        s_nop 1
        v_permlane32_swap_b32 v{t1}, v{t2}
        s_nop 1
        s_branch L_norm
        """)

    def b_wsetup(self):
        a = self.a; L = LANE
        a(f"""
        s_lshr_b32 s56, s{C_}, 3
        s_mov_b32 s57, s{SP}
        v_lshrrev_b32 v1, 3, v{L}
        v_mul_u32_u24 v242, 896, v1
        v_bfe_u32 v1, v{L}, 4, 1
        v_lshlrev_b32 v1, 2, v1
        v_and_b32 v2, 7, v{L}
        v_xor_b32 v1, v1, v2
        v_lshl_add_u32 v242, v1, 4, v242
        s_mul_i32 s58, s{W4}, {GW}
        s_mul_i32 s59, s{W4}, {448*896}
        s_lshl_b32 s46, s57, 7
        s_add_u32 s59, s59, s46
        s_mul_i32 s60, s{W4}, {112*896}
        s_add_u32 s60, s60, s46
        v_lshrrev_b32 v1, 5, v{L}
        v_lshlrev_b32 v243, 9, v1
        v_bfe_u32 v1, v{L}, 2, 2
        v_lshl_add_u32 v243, v1, 7, v243
        v_bfe_u32 v1, v{L}, 3, 1
        s_and_b32 s46, s{W4}, 1
        v_xor_b32 v1, s46, v1
        v_lshl_add_u32 v243, v1, 6, v243
        v_bfe_u32 v1, v{L}, 4, 1
        v_lshl_add_u32 v243, v1, 5, v243
        v_and_b32 v1, 3, v{L}
        v_lshl_add_u32 v243, v1, 3, v243
        v_add_u32 v243, s58, v243
        v_xor_b32 v244, 64, v243
        v_lshlrev_b32 v245, 4, v{L}
        v_and_b32 v246, 31, v{L}
        v_lshlrev_b32 v246, 2, v246
        s_lshl_b32 s46, s{R_}, 2
        s_lshl_b32 s47, s56, 1
        s_add_u32 s46, s46, s47
        s_lshr_b32 s47, s{W4}, 1
        s_add_u32 s48, s46, s47
        s_xor_b32 s49, s48, 1
        s_mul_i32 s61, s48, 112
        s_mul_i32 s62, s49, 112
        s_mul_i32 s47, s{W4}, 28
        s_add_u32 s61, s61, s47
        s_add_u32 s62, s62, s47
        s_lshl_b32 s61, s61, 10
        s_lshl_b32 s62, s62, 10
        s_add_u32 s61, s61, {WS_H}
        s_add_u32 s62, s62, {WS_H}
        s_lshl_b32 s88, s48, 5
        s_lshl_b32 s89, s49, 5
        s_lshl_b32 s47, s{W4}, 3
        s_add_u32 s88, s88, s47
        s_add_u32 s89, s89, s47
        s_lshl_b32 s88, s88, 10
        s_lshl_b32 s89, s89, 10
        s_add_u32 s88, s88, {WS_O}
        s_add_u32 s89, s89, {WS_O}
        s_lshl_b32 s63, s{R_}, 11
        s_add_u32 s63, s63, {WS_FLG}
        s_lshr_b32 s47, s{W4}, 1
        s_lshl_b32 s47, s47, 9
        s_add_u32 s3, s63, s47
        s_lshl_b32 s47, s56, 9
        s_add_u32 s63, s63, s47
        s_lshl_b32 s47, s{W4}, 7
        s_add_u32 s63, s63, s47
        s_mul_i32 s47, s{W4}, 7
        s_and_b32 s47, s47, 0xfe
        s_mov_b64 s[90:91], 0xff
        s_lshl_b64 s[90:91], s[90:91], s47
        s_mov_b64 s[92:93], 0xff
        s_lshl_b32 s47, s{CF}, 3
        s_mul_i32 s49, s47, 37
        s_lshr_b32 s49, s49, 10
        s_add_u32 s47, s47, 7
        s_mul_i32 s47, s47, 37
        s_lshr_b32 s47, s47, 10
        s_min_u32 s47, s47, 3
        v_mov_b32 v1, s49
        v_mov_b32 v2, s47
        v_cmp_eq_u32 vcc, 0, v{L}
        s_lshl_b32 s47, s{CF}, 3
        s_and_b32 s49, s{W4}, 1
        s_lshl_b32 s49, s49, 2
        s_add_u32 s47, s47, s49
        v_cndmask_b32 v1, v2, v1, vcc
        v_lshl_add_u32 v250, v1, 7, s47
        v_mov_b32 v252, 1
        v_and_b32 v1, 31, v{L}
        v_mul_u32_u24 v247, 896, v1
        v_lshrrev_b32 v1, 5, v{L}
        v_lshl_add_u32 v248, v1, 4, v247
        v_lshl_add_u32 v247, v1, 3, v247
        s_mul_i32 s94, s48, {32*896}
        s_lshl_b32 s47, s57, 7
        s_add_u32 s94, s94, s47
        s_and_b32 s47, s{W4}, 1
        s_lshl_b32 s47, s47, 6
        s_add_u32 s94, s94, s47
        """)
        for i in range(16, 64): a(f"v_mov_b32 v{i}, 0")

    def wdma(self, ks, pace=None):
        a = self.a
        k = ks % self.o["nws"]; self.issued.add(("w", ks))
        sb, sl = (58, k * 2048) if k < 11 else (96, (k - 11) * 2048) if k < 13 else (97, 0)
        for i in range(2):
            a(f"s_add_u32 m0, s{sb}, {sl + i*1024}")
            if ks < 28:
                a(f"s_add_u32 s46, s59, {(ks*16 + 8*i) * 896}")
                a.vmem(f"buffer_load_dwordx4 v242, {sr(SWD,4)}, s46 offen lds", ("w", ks))
            else:
                k = ks - 28
                a(f"s_add_u32 s46, s60, {((k//2)*28 + (k%2)*16 + 8*i) * 896}")
                a.vmem(f"buffer_load_dwordx4 v242, {sr(SWO,4)}, s46 offen lds", ("w", ks))
            if pace: pace()

    def b_gemm2(self):
        a, o = self.a, self.o
        NP = o["npre"]; HF = 80; WF = 64; E = o["early"]; NW = o["nws"]
        issued = self.issued
        def pace():
            if len(a.vm) > o["bwin"]:
                a(f"s_waitcnt vmcnt({o['bwin']})"); a.vm = a.vm[-o["bwin"]:]
        def wdma(ks, paced=False): self.wdma(ks, pace if paced else None)
        def hreg(ks, rt): return HF + (ks % NP) * 8 + 4 * rt
        def hload(ks, paced=False):
            issued.add(("h", ks))
            for rt in range(2):
                s, k = (61 + rt, ks) if ks < 28 else (88 + rt, ks - 28)
                a.vmem(f"buffer_load_dwordx4 {vr(hreg(ks, rt), 4)}, v245, {sr(SWS,4)}, s{s} offen offset:{(k%4)*1024}{o['hsc'] if ks < 28 else o['osc']}", ("h", ks))
                if k % 4 == 3: a(f"s_add_u32 s{s}, s{s}, 4096")
                if paced: pace()
        def wread(ks):
            assert ("w", ks) in issued
            a.need_vm(("w", ks))
            for ct in range(2):
                for j in range(2):
                    k = ks % NW
                    vb, sl = (243, k * 2048) if k < 11 else (240, (k - 11) * 2048) if k < 13 else (253, 0)
                    a.lds(f"ds_read_b64_tr_b16 {vr(WF + (ks%2)*8 + 4*ct + 2*j, 2)}, v{vb+ct} offset:{sl + j*1024}", ("wr", ks))
        self.stamp(2)
        a(f"s_setprio {o['bprio']}")
        for j in range(4):
            a.vmem(f"buffer_load_dwordx2 {vr(WF + 2*j, 2)}, v247, {sr(SX,4)}, s94 offen offset:{16*j}", "xr")
        for ks in range(self.wnext, NWS): wdma(ks, True)
        a.need_vm("xr")
        self.stamp(10)
        for j in range(8):
            a(f"v_lshlrev_b32 v{2*j}, 16, v{WF+j}\nv_and_b32 v{2*j+1}, 0xffff0000, v{WF+j}")
        a(f"""
        s_lshl_b32 s96, s{W4}, 12
        s_add_u32 s96, s96, {RING + 49152}
        s_lshl_b32 s97, s{W4}, 11
        s_add_u32 s97, s97, {QREG}
        v_subrev_u32 v253, s58, v243
        v_add_u32 v240, s96, v253
        v_add_u32 v253, s97, v253
        v_xor_b32 v241, 64, v240
        v_xor_b32 v254, 64, v253
        """)
        if o["l2warm"]:
            a(f"""
            s_and_b32 s47, s{R_}, 3
            v_lshrrev_b32 v249, 4, v{LANE}
            v_lshlrev_b32 v249, 6, v249
            v_and_b32 v80, 15, v{LANE}
            v_add_u32 v249, v249, v80
            s_mul_i32 s46, s47, {16*896}
            s_add_u32 s46, s46, s59
            s_add_u32 s46, s46, {12*16*896}
            v_mul_u32_u24 v249, 896, v249
            """)
            a.vmem(f"buffer_load_dword v80, v249, {sr(SWD,4)}, s46 offen", "warm")
            a(f"""
            v_min_u32 v249, 28, v{LANE}
            v_mul_u32_u24 v249, {4*896}, v249
            s_mul_i32 s46, s47, 896
            s_add_u32 s46, s46, s60
            """)
            a.vmem(f"buffer_load_dword v81, v249, {sr(SWO,4)}, s46 offen", "warm")
        a("s_barrier")
        a(f"s_mov_b64 exec, 3\nbuffer_store_dword v252, v250, {sr(SWS,4)}, s3 offen sc1\ns_mov_b64 exec, -1")
        a.vm.append("flag")
        for ks in range(NWS, NW): wdma(ks, True)
        self.stamp(11)
        self.poll(SWS, "s63", 246, 249, 1, 90)
        self.stamp(3)
        for ks in range(NP): hload(ks, True)
        self.stamp(4)
        todo = []
        def kstep(ks, paced, nref):
            if ks + 1 < 36 and ks + 1 != E: wread(ks + 1)
            assert ("h", ks) in issued
            a.need_lds(("wr", ks)); a.need_vm(("h", ks))
            if ks + NW < 36: todo.append(lambda p, k=ks + NW: wdma(k, p))
            for j in range(4):
                ct, rt = j & 1, j >> 1
                a(f"v_mfma_f32_32x32x16_bf16 {vr(16*j,16)}, {vr(WF + (ks%2)*8 + 4*ct, 4)}, {vr(hreg(ks, rt), 4)}, {vr(16*j,16)}")
                if j == 3 and ks + NP < 28: todo.append(lambda p, k=ks + NP: hload(k, p))
                if j < nref and todo: todo.pop(0)(paced)
        if E: wread(0)
        for ks in range(E):
            kstep(ks, True, 0)
            while todo: todo.pop(0)(True)
        wread(E)
        a("s_setprio 0")
        a("s_barrier")
        self.stamp(5)
        for ks in range(E, 36):
            if ks == o["opoll"]:
                while todo: todo.pop(0)(False)
                self.stamp(6)
                a("s_add_u32 s63, s63, 1024")
                self.poll(SWS, "s63", 246, 249, 1, 92)
                self.stamp(7)
                assert ks >= 36 - NP
                for k2 in range(28, 36): hload(k2)
            kstep(ks, False, 0 if ks < E + o["hold"] else 4)
        self.stamp(8)
        a("v_add_u32 v249, s58, v245")
        for j in (1, 2, 3):
            a(f"s_xor_b32 s46, s{W4}, {j}\ns_mul_i32 s46, s46, {GW}\nv_add_u32 v{249+j}, s46, v245")
        for j in (1, 2, 3):
            for i in range(4): a(f"ds_write_b128 v249, {vr(16*j + 4*i, 4)} offset:{(j-1)*4096 + 1024*i}")
        a("s_waitcnt lgkmcnt(0)\ns_barrier"); a.lg = []
        for j in range(3):
            for i in range(4): a.lds(f"ds_read_b128 {vr(HF + 16*j + 4*i, 4)}, v{250+j} offset:{4096*j + 1024*i}", ("rr", j))
        for j in range(3):
            a.need_lds(("rr", j))
            for i in range(16): a(f"v_add_f32 v{i}, v{i}, v{HF + 16*j + i}")
        for i in range(8): a(f"v_cvt_pk_bf16_f32 v{i}, v{2*i}, v{2*i+1}")
        a("s_nop 1")
        for p in (0, 4):
            a(f"v_permlane32_swap_b32 v{p}, v{p+2}\nv_permlane32_swap_b32 v{p+1}, v{p+3}")
        a("s_nop 1")
        for p in (0, 1):
            a(f"buffer_store_dwordx4 {vr(4*p,4)}, v248, {sr(SOUT,4)}, s94 offen offset:{32*p}")
        self.stamp(9)
        self.dump_stamps(16)
        a("s_endpgm")

    def build(self):
        a = self.a
        self.prologue()
        self.a_p0()
        a(f"s_cmp_eq_u32 s{SP}, 7\ns_cbranch_scc1 L_AS")
        a.reset(); self.a_p1_F()
        a.label("L_att0")
        self.attention()
        a.label("L_AS")
        a.reset(); self.a_p1_S()
        a("s_branch L_att0")
        a.label("L_B")
        a.reset(); self.b_prologue()
        a(f"s_cmp_eq_u32 s{SP}, 7\ns_cbranch_scc1 L_BS")
        sv = list(a.vm)
        self.b_p1_F(); self.b_gemm2()
        a.label("L_BS")
        a.reset(); a.vm = sv; self.b_p1_S()
        a.label("L_end")
        return self.finish()

    def finish(self):
        lines = fix_hazards(self.a.lines)
        head = open("cdna_kernels/" + NAME + ".s.ref").read().split("; Override launch")[0]
        s = head + f"; @launch grid=(256,1,1) block=(512,1,1) lds=163840\n"
        s += f""".amdgcn_target "amdgcn-amd-amdhsa--gfx950"
.text
.globl {NAME}_kernel
.p2align 8
.type {NAME}_kernel,@function
{NAME}_kernel:
""" + "\n".join(lines) + f"""
    s_endpgm
.section .rodata,"a"
.p2align 6
.amdhsa_kernel {NAME}_kernel
  .amdhsa_next_free_vgpr 256
  .amdhsa_next_free_sgpr 102
  .amdhsa_accum_offset 256
  .amdhsa_group_segment_fixed_size 0
  .amdhsa_kernarg_size 96
  .amdhsa_user_sgpr_count 2
  .amdhsa_user_sgpr_kernarg_segment_ptr 1
  .amdhsa_system_sgpr_workgroup_id_x 1
.end_amdhsa_kernel
"""
        return s

def fix_hazards(lines, verbose=True):
    out = []
    for ln in lines:
        if parse(ln) is not None:
            pr = check_hazards(out[-30:] + [ln])
            pr = [p for p in pr if p.endswith("-> [" + parse(ln).text + "]")]
            tail = check_hazards(out[-30:])
            pr = [p for p in pr if p not in tail]
            if pr:
                k = max(int(re.search(r"need (\d+)", p).group(1)) - int(re.search(r"have (\d+)", p).group(1)) for p in pr)
                if verbose: print("; auto nop", k, pr[0], file=sys.stderr)
                out.append(f"    s_nop {k-1}")
        out.append(ln)
    return out

if __name__ == "__main__":
    kw = {}
    outp = "cdna_kernels/" + NAME + ".s"
    for arg in sys.argv[1:]:
        k, v = arg.split("=")
        if k == "out": outp = v; continue
        try: v = eval(v)
        except Exception: pass
        kw[k] = v
    open(outp, "w").write(Gen(**kw).build())
```

```python
import sys, struct, math, re
from asmlib import Asm, vr, sr, check_hazards, parse

NAME = "parallel_sum__grouped_kv_mqa__glu_gated_geglu__prompt"
WS_KV, WS_H, WS_O, WS_FLG, WS_DBG, WS_SIZE = 0, 0x100000, 0x800000, 0xA00000, 0xB00000, 0x1000000
RING = 98304
QREG = 90112
RREG = 89600
GW = 22528
NWS = 11

def f2u(x): return struct.unpack("<I", struct.pack("<f", x))[0]
def hx(x): return hex(f2u(x))

SX, SWQ, SW1, SWS, SWD, SWO, SOUT, SDBG = 8, 12, 16, 20, 24, 28, 32, 36
R_, C_, WV, W4, ROT, CF, SP = 40, 41, 42, 43, 95, 100, 101
AT, L16, C1, C3, IR2, AQ, M, QS, RS, TA, TB, TC, LANE = 240, 244, 245, 246, 247, 248, 249, 250, 251, 252, 253, 254, 255
P = [112 + 16 * i for i in range(7)]
BIG = 10**6

DEF = dict(mapping="B", bud=4, stamps=False, mimic=True, spin=200000, opoll=16, npre=20, force_slow=False,
           barA=10, barB=8, codepf=True, kvsc=" sc1", hsc=" sc1", osc=" sc1", stsc=" sc1",
           rot=True, LA=6, wbatch=2, bwin=6, early=4, hold=0, kvrot=True, bar0=6, nobar=False, nofill=False, noread=False, bprio=3,
           npre0=0, wearly=True, psleep=8, l2warm=False, nws=14, ownlast=True, diag=None)

def run_job(a, job):
    for x in job:
        x() if callable(x) else a(x)

class Gen:
    def __init__(self, **kw):
        self.o = dict(DEF); self.o.update(kw)
        self.a = Asm()

    def stamp(self, k):
        if not self.o["stamps"]: return
        a = self.a
        a("s_memtime s[4:5]\ns_waitcnt lgkmcnt(0)"); a.lg = []
        a(f"s_sub_u32 s{64+k}, s4, s98")
    def dump_stamps(self, tmpv):
        if not self.o["stamps"]: return
        a = self.a
        a("s_memrealtime s[4:5]\ns_waitcnt lgkmcnt(0)\ns_mov_b32 s78, s4\ns_mov_b32 s79, s99")
        a(f"s_lshl_b32 s6, s2, 3\ns_add_u32 s6, s6, s{WV}\ns_lshl_b32 s6, s6, 6\ns_add_u32 s6, s6, {WS_DBG}")
        a(f"v_mov_b32 v{tmpv}, 0")
        for k in range(16):
            a(f"v_mov_b32 v{tmpv+1}, s{64+k}")
            a(f"buffer_store_dword v{tmpv+1}, v{tmpv}, {sr(SWS,4)}, s6 offen offset:{4*k}")
        a("s_waitcnt vmcnt(0)")

    def dpoint(self, name):
        if self.o["diag"] == name:
            self.a("s_memrealtime s[6:7]\ns_waitcnt lgkmcnt(0)"); self.a.lg = []
    def dspin(self):
        if not self.o["diag"]: return
        self.dpoint("end")
        self.a("""
        s_sub_u32 s6, s6, s98
        s_waitcnt vmcnt(0)
        s_memrealtime s[4:5]
        s_waitcnt lgkmcnt(0)
        s_add_u32 s6, s6, s4
        L_dspin:
        s_memrealtime s[4:5]
        s_waitcnt lgkmcnt(0)
        s_sub_u32 s5, s6, s4
        s_cmp_gt_i32 s5, 0
        s_cbranch_scc1 L_dspin
        """)

    def poll(self, srd, soff, voffreg, tmp, cmpval, mask_s):
        a = self.a
        L = a.newlabel("L_poll"); D = a.newlabel("L_polld")
        a(f"s_mov_b32 s46, {self.o['spin']}")
        a.label(L)
        a(f"buffer_load_dword v{tmp}, v{voffreg}, {sr(srd,4)}, {soff} offen sc1")
        a("s_waitcnt vmcnt(0)")
        a(f"v_cmp_le_u32 vcc, {cmpval}, v{tmp}")
        a("s_nop 1")
        a(f"s_and_b64 s[44:45], vcc, {sr(mask_s,2)}")
        a(f"s_cmp_eq_u64 s[44:45], {sr(mask_s,2)}")
        a(f"s_cbranch_scc1 {D}")
        a(f"s_sleep {self.o['psleep']}\ns_sub_u32 s46, s46, 1\ns_cmp_lg_u32 s46, 0")
        a(f"s_cbranch_scc1 {L}")
        a.label(D)
        a.vm = []

    def advance(self, cnt, reg, step):
        self.a(f"""
        s_add_u32 s{cnt}, s{cnt}, 1
        s_add_u32 s{reg}, s{reg}, {step}
        s_cmp_eq_u32 s{cnt}, 7
        s_cselect_b32 s{cnt}, 0, s{cnt}
        s_cselect_b32 s46, {7*step}, 0
        s_sub_u32 s{reg}, s{reg}, s46
        """)

    def prologue(self):
        a, o = self.a, self.o
        a("s_cmp_ge_u32 s2, 256\ns_cbranch_scc1 L_end")
        if o["stamps"]:
            a("s_memtime s[98:99]\ns_memrealtime s[96:97]")
        if o["diag"]: a("s_memrealtime s[98:99]")
        a("s_load_dwordx16 s[64:79], s[0:1], 0\ns_load_dwordx8 s[80:87], s[0:1], 64")
        a(f"v_lshrrev_b32 v1, 6, v0\nv_and_b32 v{LANE}, 63, v0")
        a(f"s_and_b32 s44, s2, 7\ns_lshr_b32 s45, s2, 3")
        a(f"v_readfirstlane_b32 s{WV}, v1")
        nr, nc = {"A": (2, 16), "B": (4, 8), "C": (8, 4)}[o["mapping"]]
        lc = int(math.log2(nc)); lx = int(math.log2(16 // nc))
        a(f"s_lshr_b32 s{R_}, s44, {lx}\ns_mul_i32 s{R_}, s{R_}, {nr}\ns_lshr_b32 s46, s45, {lc}\ns_add_u32 s{R_}, s{R_}, s46")
        a(f"s_and_b32 s{C_}, s44, {(1 << lx) - 1}\ns_lshl_b32 s{C_}, s{C_}, {lc}\ns_and_b32 s46, s45, {nc-1}\ns_add_u32 s{C_}, s{C_}, s46")
        a(f"s_and_b32 s{W4}, s{WV}, 3")
        a(f"s_lshr_b32 s46, s{C_}, 3\ns_sub_u32 s{CF}, s{C_}, s46\ns_and_b32 s{SP}, s{C_}, 7")
        if o["rot"]:
            a(f"s_lshl_b32 s{ROT}, s{R_}, 1\ns_add_u32 s{ROT}, s{ROT}, s{C_}\ns_mul_i32 s46, s{ROT}, 37\ns_lshr_b32 s46, s46, 8\ns_mul_i32 s46, s46, 7\ns_sub_u32 s{ROT}, s{ROT}, s46")
        else:
            a(f"s_mov_b32 s{ROT}, 0")
        a("s_waitcnt lgkmcnt(0)")
        if o["stamps"]: a("s_mov_b32 s99, s96")
        def srd(d, p, n):
            a(f"s_mov_b32 s{d}, s{p}\ns_mov_b32 s{d+1}, s{p+1}\ns_mov_b32 s{d+2}, {n}\ns_mov_b32 s{d+3}, 0x20000")
        self.srd = srd
        srd(SX, 64, 1835008); srd(SWS, 86, WS_SIZE)
        a(f"s_cmp_ge_u32 s{WV}, 4\ns_cbranch_scc1 L_B")
        if o["stamps"]:
            for k in range(16): a(f"s_mov_b32 s{64+k}, 0")

    def b_prologue(self):
        a, o, srd = self.a, self.o, self.srd
        if o["codepf"]:
            a(f"""
            s_getpc_b64 s[44:45]
            L_pc:
            s_sub_u32 s44, s44, L_pc-{NAME}_kernel
            s_subb_u32 s45, s45, 0
            s_lshr_b32 s46, s2, 3
            s_and_b32 s46, s46, 15
            s_lshl_b32 s46, s46, 2
            s_add_u32 s46, s46, s{W4}
            s_lshl_b32 s46, s46, 10
            v_lshl_add_u32 v1, v{LANE}, 4, s46
            v_min_u32 v1, L_end-{NAME}_kernel-16, v1
            global_load_dwordx4 v[4:7], v1, s[44:45]
            """)
            a.vm.append("code")
        srd(SWQ, 66, 401408); srd(SWD, 80, 1605632); srd(SWO, 72, 401408); srd(SOUT, 82, 1835008); srd(SDBG, 84, 256)
        a(f"s_and_b32 s44, s{W4}, 1\ns_cmp_eq_u32 s44, 1")
        a("s_cselect_b32 s46, s78, s76\ns_cselect_b32 s47, s79, s77")
        a(f"s_cmp_eq_u32 s{C_}, 15")
        a("s_cselect_b32 s48, s70, s68\ns_cselect_b32 s49, s71, s69")
        a(f"s_cmp_eq_u32 s{SP}, 7")
        a(f"s_cselect_b32 s{SW1}, s48, s46\ns_cselect_b32 s{SW1+1}, s49, s47")
        a(f"s_cselect_b32 s{SW1+2}, 25088, s{SWD+2}\ns_mov_b32 s{SW1+3}, 0x20000")
        if o["stamps"]:
            for k in range(16): a(f"s_mov_b32 s{64+k}, 0")

    def a_p0(self):
        a, o = self.a, self.o
        L = LANE; T = 112
        vE, vO, aX, S0, S1, Q0, Q1, t0, t1, t2 = T, T+1, T+2, T+6, T+7, T+8, T+9, T+10, T+11, T+12
        a(f"""
        v_lshrrev_b32 v{t0}, 3, v{L}
        v_mul_u32_u24 v{t0}, 896, v{t0}
        v_and_b32 v{t1}, 7, v{L}
        v_lshrrev_b32 v{t2}, 4, v{L}
        v_xor_b32 v{t1}, v{t1}, v{t2}
        v_lshl_add_u32 v{vE}, v{t1}, 4, v{t0}
        v_xor_b32 v{t1}, 4, v{t1}
        v_lshl_add_u32 v{vO}, v{t1}, 4, v{t0}
        s_lshl_b32 s44, s{R_}, 2
        s_add_u32 s44, s44, s{W4}
        s_mul_i32 s44, s44, {32*896}
        s_mul_i32 s45, s{W4}, 28672
        s_lshl_b32 s46, s{ROT}, 7
        s_add_u32 s44, s44, s46
        s_mov_b32 s57, s{ROT}
        """)
        def issue(pp):
            for g in range(4):
                a(f"s_add_u32 m0, s45, {pp*4096 + g*1024}")
                a(f"s_add_u32 s46, s44, {g*7168}")
                a.vmem(f"buffer_load_dwordx4 v{vE if g % 2 == 0 else vO}, {sr(SX,4)}, s46 offen lds", ("x", pp))
            if pp < 6: self.advance(57, 44, 128)
            if pp == o["bar0"]:
                a("s_barrier")
                self.stamp(0)
        self.stamp(12)
        issue(0); issue(1)
        self.stamp(13)
        a(f"""
        v_and_b32 v{t0}, 31, v{L}
        v_lshrrev_b32 v{t1}, 5, v{L}
        v_bfe_u32 v{t2}, v{L}, 1, 3
        v_xor_b32 v{t1}, v{t1}, v{t2}
        v_lshlrev_b32 v{t1}, 4, v{t1}
        v_lshrrev_b32 v{t2}, 3, v{t0}
        v_lshl_add_u32 v{t1}, v{t2}, 10, v{t1}
        v_and_b32 v{t2}, 7, v{t0}
        v_lshl_add_u32 v{t1}, v{t2}, 7, v{t1}
        v_add_u32 v{aX}, s45, v{t1}
        v_xor_b32 v{aX+1}, 32, v{aX}
        v_xor_b32 v{aX+2}, 64, v{aX}
        v_xor_b32 v{aX+3}, 0x60, v{aX}
        v_mov_b32 v{S0}, 0
        v_mov_b32 v{S1}, 0
        v_mov_b32 v{Q0}, 0
        v_mov_b32 v{Q1}, 0
        s_mov_b32 s47, 0x3f803f80
        """)
        self.a_addr_regs()
        def stats(pp):
            for i in range(16):
                x = 16 * pp + i
                a(f"v_dot2_f32_bf16 v{S0 + i % 2}, v{x}, s47, v{S0 + i % 2}")
                a(f"v_dot2_f32_bf16 v{Q0 + i % 2}, v{x}, v{x}, v{Q0 + i % 2}")
        for pp in range(7):
            if pp + 2 < 7: issue(pp + 2)
            a.need_vm(("x", pp))
            for i in range(4):
                a.lds(f"ds_read_b128 {vr(16*pp + 4*i, 4)}, v{aX+i} offset:{pp*4096}", ("xr", pp))
            if pp > 0:
                a.need_lds(("xr", pp - 1)); stats(pp - 1)
        a.need_lds(("xr", 6)); stats(6)
        self.stamp(1)
        a(f"""
        s_nop 1
        v_add_f32 v{S0}, v{S0}, v{S1}
        v_add_f32 v{Q0}, v{Q0}, v{Q1}
        v_mov_b32 v{S1}, v{S0}
        v_mov_b32 v{Q1}, v{Q0}
        s_mov_b32 s48, 0xffff0000
        s_lshl_b32 s49, s{W4}, 11
        v_permlane32_swap_b32 v{S0}, v{S1}
        v_permlane32_swap_b32 v{Q0}, v{Q1}
        s_add_u32 s49, s49, {QREG}
        v_add_f32 v{S0}, v{S0}, v{S1}
        v_add_f32 v{Q0}, v{Q0}, v{Q1}
        v_mul_f32 v{M}, {hx(1/448)}, v{S0}
        v_mul_f32 v{Q0}, {hx(1/448)}, v{Q0}
        v_fma_f32 v{Q0}, -v{M}, v{M}, v{Q0}
        v_max_f32 v{Q0}, 0, v{Q0}
        """)
        K = 2 * math.log2(math.e) * math.sqrt(2 / math.pi)
        job = []
        if o["mimic"]:
            def rnd(r): return [f"v_cvt_pk_bf16_f32 v{r}, v{r}, v{r}", f"v_and_b32 v{r}, s48, v{r}"]
            run_job(a, rnd(M))
            job += [f"v_mov_b32 v{IR2}, v{Q0}"]
            run_job(a, job); job = []
            job += rnd(IR2) + [f"v_add_f32 v{IR2}, {hx(1e-5)}, v{IR2}"] + rnd(IR2)
            job += [f"v_sqrt_f32 v{IR2}, v{IR2}", "s_nop 0"] + rnd(IR2)
            job += [f"v_rcp_f32 v{RS}, v{IR2}", f"v_mul_f32 v{IR2}, v{IR2}, v{IR2}"]
        else:
            a(f"v_add_f32 v{IR2}, {hx(1e-5)}, v{Q0}")
            job += [f"v_rsq_f32 v{RS}, v{IR2}", "s_nop 0"]
        job += [f"v_mul_f32 v{QS}, {hx(28 ** -0.5 * math.log2(math.e))}, v{RS}",
                f"v_mul_f32 v{C1}, {hx(-K)}, v{RS}", f"v_mul_f32 v{C3}, v{RS}, v{RS}",
                f"v_mul_f32 v{C3}, v{C3}, v{C1}", f"v_mul_f32 v{C3}, {hx(0.044715)}, v{C3}"]
        self.rstd_job = job

    def a_addr_regs(self):
        a = self.a; L = LANE; t0, t1, t2, t3 = 124, 125, 126, 127
        a(f"""
        v_lshrrev_b32 v{t0}, 5, v{L}
        v_bfe_u32 v{t1}, v{L}, 2, 2
        v_bfe_u32 v{t2}, v{L}, 1, 1
        v_lshlrev_b32 v{AT}, 10, v{t0}
        v_lshl_add_u32 v{AT}, v{t1}, 7, v{AT}
        v_lshl_add_u32 v{AT}, v{t2}, 11, v{AT}
        v_xor_b32 v{t3}, v{t1}, v{t2}
        v_lshl_add_u32 v{AT}, v{t3}, 5, v{AT}
        v_bfe_u32 v{t3}, v{L}, 4, 1
        v_lshl_add_u32 v{AT}, v{t3}, 4, v{AT}
        v_and_b32 v{t2}, 1, v{L}
        v_lshl_add_u32 v{AT}, v{t2}, 3, v{AT}
        v_add_u32 v{AT}, {RING}, v{AT}
        v_xor_b32 v{AT+1}, 32, v{AT}
        v_xor_b32 v{AT+2}, 64, v{AT}
        v_xor_b32 v{AT+3}, 0x60, v{AT}
        v_lshlrev_b32 v{AQ}, 9, v{t0}
        v_lshl_add_u32 v{AQ}, v{t1}, 6, v{AQ}
        v_lshl_add_u32 v{AQ}, v{t3}, 5, v{AQ}
        v_and_b32 v{t2}, 3, v{L}
        v_lshl_add_u32 v{AQ}, v{t2}, 3, v{AQ}
        v_add_u32 v{AQ}, {RING}, v{AQ}
        v_lshlrev_b32 v{L16}, 4, v{L}
        """)

    def center_job(self, ks, temps):
        out = []
        ta, tb, tc, td = temps
        for i in (0, 2):
            x, y = 4 * ks + i, 4 * ks + i + 1
            out += [f"v_lshlrev_b32 v{ta}, 16, v{x}", f"v_and_b32 v{tb}, s48, v{x}",
                    f"v_lshlrev_b32 v{tc}, 16, v{y}", f"v_and_b32 v{td}, s48, v{y}",
                    f"v_sub_f32 v{ta}, v{ta}, v{M}", f"v_sub_f32 v{tb}, v{tb}, v{M}",
                    f"v_sub_f32 v{tc}, v{tc}, v{M}", f"v_sub_f32 v{td}, v{td}, v{M}",
                    f"v_cvt_pk_bf16_f32 v{x}, v{ta}, v{tb}", f"v_cvt_pk_bf16_f32 v{y}, v{tc}, v{td}"]
        return out

    def q_job(self, aq):
        a = self.a
        out = [f"v_mul_f32 v{aq+i}, v{QS}, v{aq+i}" for i in range(16)]
        out += [f"v_cvt_pk_bf16_f32 v{aq+k}, v{aq+2*k}, v{aq+2*k+1}" for k in range(8)]
        out.append(f"v_add_u32 v{aq+8}, s49, v{L16}")
        out.append(lambda: a.lds(f"ds_write_b128 v{aq+8}, {vr(aq,4)}", "Qw"))
        out.append(lambda: a.lds(f"ds_write_b128 v{aq+8}, {vr(aq+4,4)} offset:1024", "Qw"))
        return out

    def gelu_job(self, a0, t):
        a = self.a; ta, tb = TA, TB
        out = []
        for h in (0, 8):
            for i in (0, 2):
                ga, gb, ua, ub = a0+h+i, a0+h+i+1, a0+h+4+i, a0+h+5+i
                out += [f"v_mul_f32 v{ta}, v{ga}, v{ga}", f"v_mul_f32 v{tb}, v{gb}, v{gb}",
                        f"v_fma_f32 v{ta}, v{ta}, v{C3}, v{C1}", f"v_fma_f32 v{tb}, v{tb}, v{C3}, v{C1}",
                        f"v_mul_f32 v{ta}, v{ta}, v{ga}", f"v_mul_f32 v{tb}, v{tb}, v{gb}",
                        f"v_exp_f32 v{ta}, v{ta}", f"v_exp_f32 v{tb}, v{tb}",
                        f"v_mul_f32 v{ua}, v{ga}, v{ua}", f"v_mul_f32 v{ub}, v{gb}, v{ub}",
                        f"v_fma_f32 v{ta}, v{ta}, v{IR2}, v{IR2}", f"v_fma_f32 v{tb}, v{tb}, v{IR2}, v{IR2}",
                        f"v_rcp_f32 v{ta}, v{ta}", f"v_rcp_f32 v{tb}, v{tb}",
                        f"v_mul_f32 v{ua}, v{ua}, v{ta}", f"v_mul_f32 v{ub}, v{ub}, v{tb}"]
            out += [f"v_cvt_pk_bf16_f32 v{a0 + h//4}, v{a0+h+4}, v{a0+h+5}",
                    f"v_cvt_pk_bf16_f32 v{a0 + h//4 + 1}, v{a0+h+6}, v{a0+h+7}"]
        sreg = 50 + t // 4
        out.append(lambda: a.vmem(f"buffer_store_dwordx4 {vr(a0,4)}, v{L16}, {sr(SWS,4)}, s{sreg} offen offset:{(t%4)*1024}{self.o['stsc']}", "hst"))
        return out

    def read_sched(self, N, pool):
        LA = self.o["LA"]
        busy = {}; out = []; nxt = 0
        for gap in range(-1, N):
            for r in [r for r, m in busy.items() if m <= gap]: del busy[r]
            k = 0
            while nxt < N and nxt - gap <= LA and (gap == -1 or k < 2):
                free = [r for r, lo, hi in pool if r not in busy and lo <= gap and nxt <= hi]
                if not free: break
                busy[free[0]] = nxt; out.append((gap, free[0])); nxt += 1; k += 1
            assert nxt > gap + 1 or nxt == N, ("no fragment buffer", gap)
        return out

    def plan(self, mseq, chunk_of, order, barpos, rs):
        N = len(mseq)
        idx = {c: i for i, c in enumerate(order)}
        last = {}
        for n, m in enumerate(mseq): last[chunk_of(m)] = n
        need = []
        for j, p in enumerate(barpos):
            e = barpos[j + 1] if j + 1 < len(barpos) else N
            lo = -1 if j == 0 else p
            mx = max([idx[chunk_of(mseq[n])] for n in range(N) if lo <= rs[n][0] < e] or [-1])
            need.append(max(mx, need[-1] if need else -1))
        rel = {}
        for c, n in last.items():
            k = [j for j, p in enumerate(barpos) if p > n]
            rel[idx[c]] = k[0] if k else len(barpos)
        return need, rel

    def mfma_stream(self, mseq, barpos, rs, read_fn, mfma_fn, jobs, bud, pre_bar=None, hook=None):
        a, o = self.a, self.o
        N = len(mseq)
        jobs = [[list(j[0]), j[1], j[2]] for j in jobs]
        def emit(x):
            if o["nofill"] and not callable(x) and x.startswith("v_"): return 1
            if callable(x): x(); return 1
            a(x); return 2 if x.startswith(("v_exp", "v_rcp", "v_sqrt", "v_rsq")) else 1
        def run(gap, bud):
            c = 0
            while jobs:
                j = jobs[0]
                if not j[0]: jobs.pop(0); continue
                must = any(k[0] and k[2] - 2 <= gap for k in jobs)
                if j[1] > gap:
                    assert not must, ("job deadline infeasible", gap, j[1], j[2]); break
                if c >= bud and not must: break
                c += emit(j[0].pop(0))
        def reads(gap):
            k = 0
            for n in range(N):
                if rs[n][0] == gap:
                    if not o["noread"]: read_fn(mseq[n], rs[n][1], n)
                    k += 1
            return k
        run(-1, 0)
        for n in range(N):
            if n in barpos:
                if pre_bar: pre_bar(barpos.index(n))
                if not (o["nobar"] and 0 < barpos.index(n) < len(barpos) - 1): a("s_barrier")
                if n == 0: reads(-1)
            if hook: hook(n)
            tags = [("w", n)]
            if n % o["wbatch"] == 0:
                tags += [("w", n + i) for i in range(1, o["wbatch"]) if n + i < N and rs[n + i][0] < n - 1]
            a.need_lds(*tags)
            mfma_fn(mseq[n], rs[n][1])
            k = reads(n)
            run(n, bud - 2 * (k - 1))
        return jobs

    def f_sched(self):
        o = self.o
        mseq = [(t, ks) for ks in range(28) for t in ("q", 0, 1, 2, 3)]
        nA = len(mseq)
        mseq += [(t, ks) for ks in range(8) for t in (4, 5)]
        mseq += [(6, ks) for ks in range(8)]
        mseq += [(t, ks) for ks in range(8, 12) for t in (4, 5, 6)]
        mseq += [(7, ks) for ks in range(12)]
        mseq += [(t, ks) for ks in range(12, 24) for t in (4, 5, 6, 7)]
        mseq += [(t, ks) for t in (4, 5, 6, 7) for ks in range(24, 28)]
        order = []
        for g in range(7): order += [("Q", g)] + [("A", 4*g + i) for i in range(4)]
        order += [("B", ks) for ks in range(28)]
        def chunk_of(m):
            t, ks = m
            return ("Q", ks // 4) if t == "q" else ("A", ks) if t < 4 else ("B", ks)
        barpos = list(range(0, nA, o["barA"])) + list(range(nA, len(mseq) - 12, o["barB"]))
        n6 = mseq.index((6, 0))
        pool = [(r, -1, BIG) for r in (224, 228, 232, 236)]
        pool += [(r, -1, nA - 1) for r in (P[6], P[6] + 4, P[6] + 8, P[6] + 12)]
        pool += [(AQ, n6, BIG)]
        pool += [(4 * k, mseq.index((7, k)), barpos[-1] - 1) for k in range(3)]
        rs = self.read_sched(len(mseq), pool)
        return mseq, chunk_of, order, barpos, rs

    def a_p1_F(self):
        a, o = self.a, self.o
        mseq, chunk_of, order, barpos, rs = self.f_sched()
        slot = {c: (i + 4) % 16 for i, c in enumerate(order)}
        acc = {"q": P[0], 0: P[1], 1: P[2], 2: P[3], 3: P[4], 4: P[5], 5: P[6], 6: P[0], 7: P[1]}
        sjob = f"""
        s_lshl_b32 s50, s{R_}, 2
        s_add_u32 s50, s50, s{W4}
        s_mul_i32 s50, s50, 112
        s_lshl_b32 s51, s{CF}, 3
        s_add_u32 s50, s50, s51
        s_lshl_b32 s50, s50, 10
        s_add_u32 s50, s50, {WS_H}
        s_add_u32 s51, s50, 4096
        """.strip().split("\n")
        first = {}; lastm = {}
        for n, (t, ks) in enumerate(mseq):
            first.setdefault(t, n); lastm[t] = n; first.setdefault(("x", ks), n)
        def read_fn(m, r, n):
            t, ks = m; b = slot[chunk_of(m)] * 4096
            if t == "q":
                ad, o0, o1 = AQ, b + (ks % 4) * 1024, b + (ks % 4) * 1024 + 256
            else:
                ad, o0, o1 = AT + t % 4, b, b + 512
            a.lds(f"ds_read_b64_tr_b16 {vr(r,2)}, v{ad} offset:{o0}", ("w", n))
            a.lds(f"ds_read_b64_tr_b16 {vr(r+2,2)}, v{ad} offset:{o1}", ("w", n))
        def mfma_fn(m, r):
            t, ks = m; d = acc[t]
            c = "0" if ks == 0 else vr(d, 16)
            a(f"v_mfma_f32_32x32x16_bf16 {vr(d,16)}, {vr(r,4)}, {vr(4*ks,4)}, {c}")
        jobs = [[self.center_job(ks, (P[5], P[5]+1, P[5]+2, P[5]+3)), -1, first[("x", ks)]] for ks in range(28)]
        jobs.append([self.rstd_job + [x.strip() for x in sjob], -1, first[6]])
        jobs.append([self.q_job(acc["q"]), lastm["q"] + 3, first[6]])
        jobs.append([self.gelu_job(acc[0], 0), lastm[0] + 3, first[7]])
        for t in (1, 2, 3): jobs.append([self.gelu_job(acc[t], t), lastm[t] + 3, BIG])
        pf = self.att_prefetch()
        for t in (4, 5, 6, 7):
            g = self.gelu_job(acc[t], t); k = (len(pf) + 7 - t) // (8 - t); mine, pf = pf[:k], pf[k:]
            out = []; step = (len(g) - 1) / len(mine)
            for i, x in enumerate(mine): out += [x] + g[round(i * step):round((i + 1) * step)]
            out += g[round(len(mine) * step):]
            assert len(out) == len(g) + len(mine)
            jobs.append([out, max(lastm[t] + 3, barpos[-1]), BIG])
        def pre_bar(j):
            if j == len(barpos) - 1: a.need_lds("Qw")
        def hook(n):
            if n == 140: self.stamp(7)
            if n == 0: self.stamp(0)
        rest = self.mfma_stream(mseq, barpos, rs, read_fn, mfma_fn, jobs, o["bud"], pre_bar, hook)
        self.stamp(2)
        for j in rest: run_job(a, j[0])
        self.stamp(3)

    def b_p1_F(self):
        a, o = self.a, self.o
        mseq, chunk_of, order, barpos, rs = self.f_sched()
        need, rel = self.plan(mseq, chunk_of, order, barpos, rs)
        L = LANE; vW, vQ = 240, 241
        a(f"""
        v_lshrrev_b32 v1, 3, v{L}
        v_mul_u32_u24 v{vW}, 3584, v1
        v_and_b32 v1, 3, v1
        s_and_b32 s44, s{W4}, 1
        v_xor_b32 v1, s44, v1
        v_bfe_u32 v2, v{L}, 1, 2
        v_xor_b32 v1, v1, v2
        v_lshl_add_u32 v{vW}, v1, 5, v{vW}
        v_and_b32 v1, 1, v{L}
        v_lshl_add_u32 v{vW}, v1, 4, v{vW}
        v_lshrrev_b32 v1, 2, v{L}
        v_mul_u32_u24 v{vQ}, 896, v1
        v_and_b32 v1, 3, v{L}
        v_lshl_add_u32 v{vQ}, v1, 4, v{vQ}
        s_lshr_b32 s45, s{W4}, 1
        s_mul_i32 s50, s45, {8*3584}
        s_lshl_b32 s46, s{CF}, 8
        s_add_u32 s50, s50, s46
        s_mul_i32 s46, s{ROT}, {64*3584}
        s_add_u32 s50, s50, s46
        s_lshl_b32 s51, s44, 11
        s_lshl_b32 s45, s45, 10
        s_add_u32 s51, s51, s45
        s_add_u32 s51, s51, {RING}
        s_mul_i32 s52, s{W4}, {16*896}
        s_mul_i32 s46, s{C_}, 56
        s_add_u32 s52, s52, s46
        s_mul_i32 s46, s{ROT}, {64*896}
        s_add_u32 s52, s52, s46
        s_lshl_b32 s53, s{W4}, 10
        s_add_u32 s53, s53, {RING}
        s_mov_b32 s96, s{ROT}
        s_mov_b32 s97, s{ROT}
        """)
        def issue(i):
            kind, k = order[i]; sl = ((i + 4) % 16) * 4096
            if kind == "Q":
                a(f"s_add_u32 m0, s53, {sl}\ns_nop 0")
                a.vmem(f"buffer_load_dwordx4 v{vQ}, {sr(SWQ,4)}, s52 offen lds", i)
                if k < 6: self.advance(97, 52, 64 * 896)
            else:
                a(f"s_add_u32 m0, s51, {sl}\ns_add_u32 s46, s50, {(k % 4)*16*3584 + (128 if kind == 'B' else 0)}")
                a.vmem(f"buffer_load_dwordx4 v{vW}, {sr(SW1,4)}, s46 offen lds", i)
                if k % 4 == 3 and i + 1 < len(order): self.advance(96, 50, 64 * 3584)
        nxt = o["npre0"]
        for i in range(nxt): issue(i)
        self.b_wsetup()
        a("s_waitcnt lgkmcnt(0)\ns_barrier")
        self.wnext = 0; self.issued = set()
        for j in range(len(barpos)):
            while nxt < len(order):
                if nxt >= 16: ok = rel[nxt - 16] <= j - 1
                elif nxt >= 12: ok = j >= 1
                else: ok = True
                if not ok: break
                issue(nxt); nxt += 1
            assert nxt > need[j], (j, nxt, need[j])
            if o["wearly"] and j >= 2 and j % 2 == 0 and self.wnext < NWS:
                self.wdma(self.wnext); self.wnext += 1
            if j == len(barpos) - 1:
                assert nxt == len(order)
                a(f"s_cmp_lg_u32 s{W4}, 0\ns_cbranch_scc1 L_nokvp")
                a("v_mov_b32 v1, 0\ns_mov_b64 s[54:55], 1\ns_mov_b64 exec, 1")
                self.poll(SDBG, "0", 1, 2, 32, 54)
                a("s_mov_b64 exec, -1")
                a.label("L_nokvp")
                a.drain_vm()
            else:
                a.need_vm(need[j])
            if not (o["nobar"] and 0 < j < len(barpos) - 1): a("s_barrier")
            if j == 0: self.dpoint("p1start")
            if j == len(barpos) - 1: self.dpoint("p1end")

    def s_sched(self):
        mseq = [("k", ks) for ks in range(28)] + [("q", ks) for ks in range(28)]
        order = [("K", g) for g in range(7)] + [("Q", g) for g in range(7)]
        def chunk_of(m): return ("Q" if m[0] == "q" else "K", m[1] // 4)
        return mseq, chunk_of, order

    def s_tile(self, t, d, swap, slot):
        a = self.a
        fr = [224, 228, 232, 236, P[6], P[6] + 4, P[6] + 8]
        def rd(ks):
            b = slot[("Q" if t == "q" else "K", ks // 4)] * 4096 + (ks % 4) * 1024; r = fr[ks % 7]
            a.lds(f"ds_read_b64_tr_b16 {vr(r,2)}, v{AQ} offset:{b}", ("w", ks))
            a.lds(f"ds_read_b64_tr_b16 {vr(r+2,2)}, v{AQ} offset:{b+256}", ("w", ks))
        for ks in range(6): rd(ks)
        for ks in range(28):
            a.need_lds(("w", ks)); r = fr[ks % 7]
            x, y = (vr(4*ks, 4), vr(r, 4)) if swap else (vr(r, 4), vr(4*ks, 4))
            a(f"v_mfma_f32_32x32x16_bf16 {vr(d,16)}, {x}, {y}, {'0' if ks == 0 else vr(d,16)}")
            if ks + 6 < 28: rd(ks + 6)

    def a_p1_S(self):
        a, o = self.a, self.o
        mseq, chunk_of, order = self.s_sched()
        slot = {c: (i + 4) % 16 for i, c in enumerate(order)}
        acc = {"q": P[0], "k": P[1], "v": P[2]}
        NM = P[5] + 8
        a(f"s_mov_b32 s52, 0x00003f80\ns_mov_b32 s53, 0x3f800000\nv_sub_f32 v{NM}, 0, v{M}")
        for x in range(0, 112, 4):
            for i in range(4):
                a(f"v_dot2_f32_bf16 v{P[5]+2*i}, v{x+i}, s52, v{NM}\nv_dot2_f32_bf16 v{P[5]+2*i+1}, v{x+i}, s53, v{NM}")
            if x == 0: run_job(a, self.rstd_job)
            else: a("s_nop 0")
            for i in range(4):
                a(f"v_cvt_pk_bf16_f32 v{x+i}, v{P[5]+2*i}, v{P[5]+2*i+1}")
        a("s_barrier")
        self.stamp(2)
        L = LANE; t0, t1, t2 = P[5], P[5] + 1, P[5] + 2
        a(f"""
        s_lshl_b32 s50, s{R_}, 2
        s_add_u32 s50, s50, s{W4}
        s_lshl_b32 s50, s50, 12
        s_cmp_eq_u32 s{C_}, 15
        s_cbranch_scc1 L_vepi
        """)
        k = acc["k"]
        self.s_tile("k", k, False, slot)
        a(f"""
        v_cmp_gt_u32 vcc, 32, v{L}
        v_bfe_u32 v{t1}, v{L}, 2, 1
        v_bfe_u32 v{t2}, v{L}, 3, 1
        v_cndmask_b32 v{t0}, 0, v{RS}, vcc
        v_xor_b32 v{t1}, v{t1}, v{t2}
        v_mul_u32_u24 v{t1}, 12, v{t1}
        v_xor_b32 v{t1}, v{t1}, v{L}
        v_lshlrev_b32 v{t1}, 4, v{t1}
        """)
        for i in range(16): a(f"v_mul_f32 v{k+i}, v{RS if i < 12 else t0}, v{k+i}")
        for i in range(8): a(f"v_cvt_pk_bf16_f32 v{k+i}, v{k+2*i}, v{k+2*i+1}")
        a(f"buffer_store_dwordx4 {vr(k,4)}, v{t1}, {sr(SWS,4)}, s50 offen sc1")
        a(f"buffer_store_dwordx4 {vr(k+4,4)}, v{t1}, {sr(SWS,4)}, s50 offen offset:1024 sc1")
        a("s_branch L_kvdone")
        a.label("L_vepi")
        v = acc["v"]; rr = P[3]
        a.reset()
        a(f"""
        s_lshl_b32 s51, s{W4}, 7
        s_add_u32 s51, s51, {RREG}
        v_and_b32 v{t0}, 31, v{L}
        v_lshl_add_u32 v{t1}, v{t0}, 2, s51
        ds_write_b32 v{t1}, v{RS}
        v_lshrrev_b32 v{t1}, 5, v{L}
        v_lshl_add_u32 v{t1}, v{t1}, 4, s51
        s_waitcnt lgkmcnt(0)
        """)
        for j in range(4): a(f"ds_read_b128 {vr(rr+4*j,4)}, v{t1} offset:{32*j}")
        a(f"""
        v_cmp_eq_u32 vcc, 28, v{t0}
        v_mov_b32 v{t2}, 0x3f803f80
        s_nop 0
        v_cndmask_b32 v{t2}, 0, v{t2}, vcc
        v_cmp_gt_u32 vcc, 28, v{t0}
        """)
        self.s_tile("k", v, True, slot)
        for i in range(16): a(f"v_mul_f32 v{v+i}, v{rr+i}, v{v+i}")
        for i in range(8): a(f"v_cvt_pk_bf16_f32 v{v+i}, v{v+2*i}, v{v+2*i+1}")
        for i in range(8): a(f"v_cndmask_b32 v{v+i}, v{t2}, v{v+i}, vcc")
        a(f"buffer_store_dwordx4 {vr(v,4)}, v{L16}, {sr(SWS,4)}, s50 offen offset:2048 sc1")
        a(f"buffer_store_dwordx4 {vr(v+4,4)}, v{L16}, {sr(SWS,4)}, s50 offen offset:3072 sc1")
        a.label("L_kvdone")
        a.reset()
        a("s_waitcnt vmcnt(0)")
        a("s_barrier")
        self.stamp(3)
        self.s_tile("q", acc["q"], False, slot)
        run_job(a, self.q_job(acc["q"]))
        a("s_waitcnt lgkmcnt(0)"); a.reset()
        a("s_barrier")
        run_job(a, self.att_prefetch())
        a("s_waitcnt vmcnt(0)")

    def b_p1_S(self):
        a, o = self.a, self.o
        mseq, chunk_of, order = self.s_sched()
        L = LANE; vK, vQ = 240, 241
        a(f"""
        v_lshrrev_b32 v1, 2, v{L}
        v_mul_u32_u24 v{vQ}, 896, v1
        v_mul_u32_u24 v{vK}, 56, v1
        v_and_b32 v1, 3, v{L}
        v_lshl_add_u32 v{vQ}, v1, 4, v{vQ}
        v_lshl_add_u32 v{vK}, v1, 4, v{vK}
        s_mul_i32 s50, s{W4}, {16*56}
        s_mul_i32 s46, s{ROT}, {64*56}
        s_add_u32 s50, s50, s46
        s_mul_i32 s52, s{W4}, {16*896}
        s_mul_i32 s46, s{C_}, 56
        s_add_u32 s52, s52, s46
        s_mul_i32 s46, s{ROT}, {64*896}
        s_add_u32 s52, s52, s46
        s_lshl_b32 s53, s{W4}, 10
        s_add_u32 s53, s53, {RING}
        s_mov_b32 s96, s{ROT}
        s_mov_b32 s97, s{ROT}
        v_mov_b32 v8, 0
        v_mov_b32 v9, 0
        v_lshlrev_b32 v1, 3, v{L}
        s_lshl_b32 s46, s{R_}, 11
        s_lshl_b32 s47, s{W4}, 9
        s_add_u32 s46, s46, s47
        s_add_u32 s46, s46, {WS_FLG}
        """)
        a.vmem(f"buffer_store_dwordx2 v[8:9], v1, {sr(SWS,4)}, s46 offen sc1", "clr")
        def issue(i):
            kind, k = order[i]; sl = ((i + 4) % 16) * 4096
            a(f"s_add_u32 m0, s53, {sl}\ns_nop 0")
            if kind == "Q":
                a.vmem(f"buffer_load_dwordx4 v{vQ}, {sr(SWQ,4)}, s52 offen lds", i)
                if k < 6: self.advance(97, 52, 64 * 896)
            else:
                a.vmem(f"buffer_load_dwordx4 v{vK}, {sr(SW1,4)}, s50 offen lds", i)
                if k < 6: self.advance(96, 50, 64 * 56)
        a("s_barrier")
        for i in range(12): issue(i)
        a.need_vm(6)
        a("s_barrier")
        issue(12); issue(13)
        a.drain_vm()
        a("s_barrier")
        a(f"""
        s_cmp_lg_u32 s{W4}, 0
        s_cbranch_scc1 L_noarr
        v_mov_b32 v1, 0
        v_mov_b32 v2, 1
        s_mov_b64 exec, 1
        buffer_atomic_add v2, v1, {sr(SDBG,4)}, 0 offen sc1
        s_mov_b64 s[54:55], 1
        s_sleep 16
        """)
        self.poll(SDBG, "0", 1, 2, 32, 54)
        a("s_mov_b64 exec, -1")
        a.label("L_noarr")
        a("s_barrier")
        self.dump_stamps(4)
        a("s_endpgm")

    KV = [0, 16, 32, 48]; QF = 64; OB = [144, 160, 176, 96]; SB = [192, 208, 112, 128]
    VKV = 241
    def kvload(self, T, part):
        a = self.a; s = 52 if part == 0 else 56; out = []
        for i in range(2):
            out.append(lambda i=i: a.vmem(f"buffer_load_dwordx4 {vr(self.KV[T % 4] + 8*part + 4*i, 4)}, v{self.VKV}, {sr(SWS,4)}, s{s} offen offset:{2048*part + 1024*i}{self.o['kvsc']}", ("kv", T, part)))
        if part == 0: out += ["s_mov_b32 s56, s52", "s_add_u32 s52, s52, 4096", "s_and_b32 s52, s52, 0xffff"]
        return out
    def att_prefetch(self):
        a = self.a; out = []
        out += [f"s_lshl_b32 s53, s{W4}, 16", f"v_add_u32 v{TC}, s53, v{L16}"]
        if self.o["kvrot"]: out += ["s_lshr_b32 s52, s2, 3", "s_lshl_b32 s52, s52, 12", "s_and_b32 s52, s52, 0xffff"]
        else: out += ["s_mov_b32 s52, 0"]
        sv = self.VKV; self.VKV = TC
        for T in (0, 1, 2, 3):
            for part in (0, 1):
                if (T, part) == (3, 1): continue
                for x in self.kvload(T, part):
                    out.append(x if not callable(x) else (lambda x=x: self._with_vkv(TC, x)))
        self.VKV = sv
        for j in range(4):
            out += [f"s_add_u32 s53, s{W4}, {j + 1}", "s_and_b32 s53, s53, 3", "s_lshl_b32 s53, s53, 11", f"s_add_u32 s53, s53, {QREG}",
                    f"v_add_u32 v{TC}, s53, v{L16}"]
            for i in range(2):
                out.append(lambda j=j, i=i: a.lds(f"ds_read_b128 {vr(self.QF + 8*j + 4*i, 4)}, v{TC} offset:{1024*i}", "Qr"))
        return out
    def _with_vkv(self, r, f):
        sv = self.VKV; self.VKV = r; f(); self.VKV = sv

    def attention(self):
        a, o = self.a, self.o
        KV, QF, OB, SB = self.KV, self.QF, self.OB, self.SB
        IDX, Z, ZERO, ONE = 240, 224, 242, 243
        a(f"s_lshl_b32 s53, s{W4}, 16\nv_add_u32 v{self.VKV}, s53, v{L16}")
        a(f"v_mov_b32 v{IDX}, 0xdddddddd")
        for i in range(4): a(f"v_mov_b32 v{Z+i}, 0")
        a(f"""
        v_mov_b32 v{ZERO}, 0
        v_mov_b32 v{ONE}, 1
        """)
        for j in range(4): a(f"v_mfma_f32_32x32x16_bf16 {vr(OB[j],16)}, {vr(Z,4)}, {vr(Z,4)}, 0")
        a("s_waitcnt lgkmcnt(0)"); a.lg = []
        a.need_vm(("kv", 0, 0))
        def qk(T, q, i):
            c = "0" if i == 0 else vr(SB[q], 16)
            a(f"v_mfma_f32_32x32x16_bf16 {vr(SB[q],16)}, {vr(KV[T%4] + 4*i, 4)}, {vr(QF + 8*q + 4*i, 4)}, {c}")
        def pv(T, q, i):
            a(f"v_smfmac_f32_32x32x32_bf16 {vr(OB[q],16)}, {vr(KV[T%4] + 8 + 4*i, 4)}, {vr(SB[q] + 8*i, 8)}, v{IDX}")
        def ex(q, k):
            for i in range(4 * k, 4 * k + 4): a(f"v_exp_f32 v{SB[q]+i}, v{SB[q]+i}")
        RB = RING
        def owrite(j):
            a(f"s_add_u32 s53, s{W4}, {j + 1}\ns_and_b32 s53, s53, 3\ns_mul_i32 s53, s53, 12288\ns_add_u32 s53, s53, {RB + j*4096}")
            a(f"v_add_u32 v{TC}, s53, v{L16}")
            for i in range(4): a(f"ds_write_b128 v{TC}, {vr(OB[j] + 4*i, 4)} offset:{1024*i}")
        qk(0, 0, 0); qk(0, 0, 1)
        self.stamp(4)
        for T in range(16):
            if T in (4, 8): self.stamp({4: 10, 8: 11}[T])
            for q in range(4):
                Tn, qn = (T, q + 1) if q < 3 else (T + 1, 0)
                Tp, qp = (T, q - 1) if q > 0 else (T - 1, 3)
                if Tn < 16:
                    if q == 3: a.need_vm(("kv", Tn, 0))
                    qk(Tn, qn, 0)
                if q == 3 and T + 4 < 16: run_job(a, self.kvload(T + 4, 0))
                if q == 3 and T == 3:
                    a("s_barrier")
                if q == 1 and T + 3 < 16: run_job(a, self.kvload(T + 3, 1))
                ex(q, 0)
                if T == 15 and q >= 2: owrite(q - 2)
                if Tn < 16: qk(Tn, qn, 1)
                ex(q, 1)
                if Tp >= 0: pv(Tp, qp, 1)
                ex(q, 2)
                if q == 0: a.need_vm(("kv", T, 1))
                pv(T, q, 0)
                ex(q, 3)
        owrite(2)
        pv(15, 3, 1)
        self.stamp(5)
        a(f"s_mul_i32 s53, s{W4}, 12288\ns_add_u32 s53, s53, {RB}\nv_add_u32 v{TC}, s53, v{L16}")
        a(f"""
        s_lshl_b32 s55, s{R_}, 2
        s_add_u32 s55, s55, s{W4}
        s_lshl_b32 s55, s55, 5
        s_lshl_b32 s53, s{C_}, 1
        s_add_u32 s55, s55, s53
        s_lshl_b32 s55, s55, 10
        s_add_u32 s55, s55, {WS_O}
        s_lshl_b32 s54, s{R_}, 11
        s_add_u32 s54, s54, {WS_FLG + 1024}
        s_lshr_b32 s53, s{W4}, 1
        s_lshl_b32 s53, s53, 9
        s_add_u32 s54, s54, s53
        s_lshr_b32 s53, s{C_}, 2
        s_lshl_b32 s53, s53, 7
        s_add_u32 s54, s54, s53
        s_and_b32 s53, s{C_}, 3
        s_lshl_b32 s53, s53, 3
        s_add_u32 s54, s54, s53
        s_and_b32 s53, s{W4}, 1
        s_lshl_b32 s53, s53, 2
        s_add_u32 s54, s54, s53
        """)
        a("s_waitcnt lgkmcnt(0)\ns_barrier")
        self.stamp(8)
        for j in range(3):
            for i in range(4): a.lds(f"ds_read_b128 {vr(SB[j] + 4*i, 4)}, v{TC} offset:{4096*j + 1024*i}", ("or", j))
        O = OB[3]
        for j in range(3):
            a.need_lds(("or", j))
            for i in range(16): a(f"v_add_f32 v{O+i}, v{O+i}, v{SB[j]+i}")
        t1, t2 = TA, TB
        a(f"""
        v_mov_b32 v{t1}, v{O+12}
        v_mov_b32 v{t2}, v{O+12}
        s_nop 1
        v_permlane32_swap_b32 v{t1}, v{t2}
        s_nop 1
        v_cmp_le_f32 vcc, {hx(2.0**-60)}, v{t2}
        v_mov_b32 v{t1}, {hx(2.0**60)}
        v_cmp_ge_f32 s[44:45], v{t1}, v{t2}
        s_nop 1
        s_and_b64 s[44:45], s[44:45], vcc
        s_cmp_eq_u64 s[44:45], -1
        """)
        a("s_cbranch_scc1 L_slow" if o["force_slow"] else "s_cbranch_scc0 L_slow")
        a.label("L_norm")
        a(f"""
        v_rcp_f32 v{t2}, v{t2}
        v_cmp_gt_u32 vcc, 32, v{LANE}
        s_nop 1
        v_cndmask_b32 v{t1}, 0, v{t2}, vcc
        """)
        for i in range(16): a(f"v_mul_f32 v{O+i}, v{t2 if i < 12 else t1}, v{O+i}")
        for i in range(8): a(f"v_cvt_pk_bf16_f32 v{O+i}, v{O+2*i}, v{O+2*i+1}")
        a(f"buffer_store_dwordx4 {vr(O,4)}, v{L16}, {sr(SWS,4)}, s55 offen sc1")
        a(f"buffer_store_dwordx4 {vr(O+4,4)}, v{L16}, {sr(SWS,4)}, s55 offen offset:1024 sc1")
        self.stamp(9)
        a("s_waitcnt vmcnt(0)")
        a(f"buffer_store_dword v{ONE}, v{ZERO}, {sr(SWS,4)}, s54 offen sc1")
        self.stamp(6)
        self.dump_stamps(4)
        a("s_endpgm")
        S = SB[3]; MX = TC
        a.label("L_slow")
        a(f"v_mov_b32 v{MX}, 0xff800000\ns_mov_b32 s52, 0")
        a.label("L_slow1")
        for i in range(2): a(f"buffer_load_dwordx4 {vr(4*i,4)}, v{L16}, {sr(SWS,4)}, s52 offen offset:{i*1024} sc1")
        a("s_waitcnt vmcnt(0)")
        qk(0, 3, 0); qk(0, 3, 1)
        a("s_nop 7\ns_nop 3")
        for i in range(0, 16, 2): a(f"v_max3_f32 v{MX}, v{MX}, v{S+i}, v{S+i+1}")
        a(f"s_add_u32 s52, s52, 4096\ns_cmp_lt_u32 s52, {64*4096}\ns_cbranch_scc1 L_slow1")
        a(f"v_mov_b32 v{t1}, v{MX}\ns_nop 1\nv_permlane32_swap_b32 v{MX}, v{t1}\ns_nop 1\nv_max_f32 v{MX}, v{MX}, v{t1}")
        for i in range(16): a(f"v_mov_b32 v{O+i}, 0")
        a("s_mov_b32 s52, 0")
        a.label("L_slow2")
        for i in range(4): a(f"buffer_load_dwordx4 {vr(4*i,4)}, v{L16}, {sr(SWS,4)}, s52 offen offset:{i*1024} sc1")
        a("s_waitcnt vmcnt(0)")
        qk(0, 3, 0); qk(0, 3, 1)
        a("s_nop 7\ns_nop 3")
        for i in range(16): a(f"v_sub_f32 v{S+i}, v{S+i}, v{MX}")
        for i in range(16): a(f"v_exp_f32 v{S+i}, v{S+i}")
        a("s_nop 1")
        pv(0, 3, 0); pv(0, 3, 1)
        a(f"s_add_u32 s52, s52, 4096\ns_cmp_lt_u32 s52, {64*4096}\ns_cbranch_scc1 L_slow2")
        a(f"""
        s_nop 7
        s_nop 3
        v_mov_b32 v{t1}, v{O+12}
        v_mov_b32 v{t2}, v{O+12}
        s_nop 1
        v_permlane32_swap_b32 v{t1}, v{t2}
        s_nop 1
        s_branch L_norm
        """)

    def b_wsetup(self):
        a = self.a; L = LANE
        a(f"""
        s_lshr_b32 s56, s{C_}, 3
        s_mov_b32 s57, s{SP}
        v_lshrrev_b32 v1, 3, v{L}
        v_mul_u32_u24 v242, 896, v1
        v_bfe_u32 v1, v{L}, 4, 1
        v_lshlrev_b32 v1, 2, v1
        v_and_b32 v2, 7, v{L}
        v_xor_b32 v1, v1, v2
        v_lshl_add_u32 v242, v1, 4, v242
        s_mul_i32 s58, s{W4}, {GW}
        s_mul_i32 s59, s{W4}, {448*896}
        s_lshl_b32 s46, s57, 7
        s_add_u32 s59, s59, s46
        s_mul_i32 s60, s{W4}, {112*896}
        s_add_u32 s60, s60, s46
        v_lshrrev_b32 v1, 5, v{L}
        v_lshlrev_b32 v243, 9, v1
        v_bfe_u32 v1, v{L}, 2, 2
        v_lshl_add_u32 v243, v1, 7, v243
        v_bfe_u32 v1, v{L}, 3, 1
        s_and_b32 s46, s{W4}, 1
        v_xor_b32 v1, s46, v1
        v_lshl_add_u32 v243, v1, 6, v243
        v_bfe_u32 v1, v{L}, 4, 1
        v_lshl_add_u32 v243, v1, 5, v243
        v_and_b32 v1, 3, v{L}
        v_lshl_add_u32 v243, v1, 3, v243
        v_add_u32 v243, s58, v243
        v_xor_b32 v244, 64, v243
        v_lshlrev_b32 v245, 4, v{L}
        v_and_b32 v246, 31, v{L}
        v_lshlrev_b32 v246, 2, v246
        s_lshl_b32 s46, s{R_}, 2
        s_lshl_b32 s47, s56, 1
        s_add_u32 s46, s46, s47
        s_lshr_b32 s47, s{W4}, 1
        s_add_u32 s48, s46, s47
        s_xor_b32 s49, s48, 1
        s_mul_i32 s61, s48, 112
        s_mul_i32 s62, s49, 112
        s_mul_i32 s47, s{W4}, 28
        s_add_u32 s61, s61, s47
        s_add_u32 s62, s62, s47
        s_lshl_b32 s61, s61, 10
        s_lshl_b32 s62, s62, 10
        s_add_u32 s61, s61, {WS_H}
        s_add_u32 s62, s62, {WS_H}
        s_lshl_b32 s88, s48, 5
        s_lshl_b32 s89, s49, 5
        s_lshl_b32 s47, s{W4}, 3
        s_add_u32 s88, s88, s47
        s_add_u32 s89, s89, s47
        s_lshl_b32 s88, s88, 10
        s_lshl_b32 s89, s89, 10
        s_add_u32 s88, s88, {WS_O}
        s_add_u32 s89, s89, {WS_O}
        s_lshl_b32 s63, s{R_}, 11
        s_add_u32 s63, s63, {WS_FLG}
        s_lshr_b32 s47, s{W4}, 1
        s_lshl_b32 s47, s47, 9
        s_add_u32 s3, s63, s47
        s_lshl_b32 s47, s56, 9
        s_add_u32 s63, s63, s47
        s_lshl_b32 s47, s{W4}, 7
        s_add_u32 s63, s63, s47
        s_mul_i32 s47, s{W4}, 7
        s_and_b32 s47, s47, 0xfe
        s_mov_b64 s[90:91], 0xff
        s_lshl_b64 s[90:91], s[90:91], s47
        s_mov_b64 s[92:93], 0xff
        s_lshl_b32 s47, s{CF}, 3
        s_mul_i32 s49, s47, 37
        s_lshr_b32 s49, s49, 10
        s_add_u32 s47, s47, 7
        s_mul_i32 s47, s47, 37
        s_lshr_b32 s47, s47, 10
        s_min_u32 s47, s47, 3
        v_mov_b32 v1, s49
        v_mov_b32 v2, s47
        v_cmp_eq_u32 vcc, 0, v{L}
        s_lshl_b32 s47, s{CF}, 3
        s_and_b32 s49, s{W4}, 1
        s_lshl_b32 s49, s49, 2
        s_add_u32 s47, s47, s49
        v_cndmask_b32 v1, v2, v1, vcc
        v_lshl_add_u32 v250, v1, 7, s47
        v_mov_b32 v252, 1
        v_and_b32 v1, 31, v{L}
        v_mul_u32_u24 v247, 896, v1
        v_lshrrev_b32 v1, 5, v{L}
        v_lshl_add_u32 v248, v1, 4, v247
        v_lshl_add_u32 v247, v1, 3, v247
        s_mul_i32 s94, s48, {32*896}
        s_lshl_b32 s47, s57, 7
        s_add_u32 s94, s94, s47
        s_and_b32 s47, s{W4}, 1
        s_lshl_b32 s47, s47, 6
        s_add_u32 s94, s94, s47
        """)
        for i in range(16, 64): a(f"v_mov_b32 v{i}, 0")

    def wdma(self, ks, pace=None):
        a = self.a
        k = ks % self.o["nws"]; self.issued.add(("w", ks))
        sb, sl = (58, k * 2048) if k < 11 else (96, (k - 11) * 2048) if k < 13 else (97, 0)
        for i in range(2):
            a(f"s_add_u32 m0, s{sb}, {sl + i*1024}")
            if ks < 28:
                a(f"s_add_u32 s46, s59, {(ks*16 + 8*i) * 896}")
                a.vmem(f"buffer_load_dwordx4 v242, {sr(SWD,4)}, s46 offen lds", ("w", ks))
            else:
                k = ks - 28
                a(f"s_add_u32 s46, s60, {((k//2)*28 + (k%2)*16 + 8*i) * 896}")
                a.vmem(f"buffer_load_dwordx4 v242, {sr(SWO,4)}, s46 offen lds", ("w", ks))
            if pace: pace()

    def b_gemm2(self):
        a, o = self.a, self.o
        NP = o["npre"]; HF = 80; WF = 64; E = o["early"]; NW = o["nws"]
        issued = self.issued
        def pace():
            if len(a.vm) > o["bwin"]:
                a(f"s_waitcnt vmcnt({o['bwin']})"); a.vm = a.vm[-o["bwin"]:]
        def wdma(ks, paced=False): self.wdma(ks, pace if paced else None)
        def hreg(ks, rt): return HF + (ks % NP) * 8 + 4 * rt
        def hload(ks, paced=False):
            issued.add(("h", ks))
            for rt in range(2):
                s, k = (61 + rt, ks) if ks < 28 else (88 + rt, ks - 28)
                a.vmem(f"buffer_load_dwordx4 {vr(hreg(ks, rt), 4)}, v245, {sr(SWS,4)}, s{s} offen offset:{(k%4)*1024}{o['hsc'] if ks < 28 else o['osc']}", ("h", ks))
                if k % 4 == 3: a(f"s_add_u32 s{s}, s{s}, 4096")
                if paced: pace()
        def wread(ks):
            assert ("w", ks) in issued
            a.need_vm(("w", ks))
            for ct in range(2):
                for j in range(2):
                    k = ks % NW
                    vb, sl = (243, k * 2048) if k < 11 else (240, (k - 11) * 2048) if k < 13 else (253, 0)
                    a.lds(f"ds_read_b64_tr_b16 {vr(WF + (ks%2)*8 + 4*ct + 2*j, 2)}, v{vb+ct} offset:{sl + j*1024}", ("wr", ks))
        self.stamp(2)
        a(f"s_setprio {o['bprio']}")
        for j in range(4):
            a.vmem(f"buffer_load_dwordx2 {vr(WF + 2*j, 2)}, v247, {sr(SX,4)}, s94 offen offset:{16*j}", "xr")
        for ks in range(self.wnext, NWS): wdma(ks, True)
        a.need_vm("xr")
        self.stamp(10)
        for j in range(8):
            a(f"v_lshlrev_b32 v{2*j}, 16, v{WF+j}\nv_and_b32 v{2*j+1}, 0xffff0000, v{WF+j}")
        a(f"""
        s_lshl_b32 s96, s{W4}, 12
        s_add_u32 s96, s96, {RING + 49152}
        s_lshl_b32 s97, s{W4}, 11
        s_add_u32 s97, s97, {QREG}
        v_subrev_u32 v253, s58, v243
        v_add_u32 v240, s96, v253
        v_add_u32 v253, s97, v253
        v_xor_b32 v241, 64, v240
        v_xor_b32 v254, 64, v253
        """)
        if o["l2warm"]:
            a(f"""
            s_and_b32 s47, s{R_}, 3
            v_lshrrev_b32 v249, 4, v{LANE}
            v_lshlrev_b32 v249, 6, v249
            v_and_b32 v80, 15, v{LANE}
            v_add_u32 v249, v249, v80
            s_mul_i32 s46, s47, {16*896}
            s_add_u32 s46, s46, s59
            s_add_u32 s46, s46, {12*16*896}
            v_mul_u32_u24 v249, 896, v249
            """)
            a.vmem(f"buffer_load_dword v80, v249, {sr(SWD,4)}, s46 offen", "warm")
            a(f"""
            v_min_u32 v249, 28, v{LANE}
            v_mul_u32_u24 v249, {4*896}, v249
            s_mul_i32 s46, s47, 896
            s_add_u32 s46, s46, s60
            """)
            a.vmem(f"buffer_load_dword v81, v249, {sr(SWO,4)}, s46 offen", "warm")
        a("s_barrier")
        self.dpoint("hpub")
        a(f"s_mov_b64 exec, 3\nbuffer_store_dword v252, v250, {sr(SWS,4)}, s3 offen sc1\ns_mov_b64 exec, -1")
        a.vm.append("flag")
        for ks in range(NWS, NW): wdma(ks, True)
        self.stamp(11)
        self.poll(SWS, "s63", 246, 249, 1, 90)
        self.stamp(3)
        for ks in range(NP): hload(ks, True)
        self.stamp(4)
        todo = []
        def kstep(ks, paced, nref):
            if ks + 1 < 36 and ks + 1 != E: wread(ks + 1)
            assert ("h", ks) in issued
            a.need_lds(("wr", ks)); a.need_vm(("h", ks))
            if ks + NW < 36: todo.append(lambda p, k=ks + NW: wdma(k, p))
            for j in range(4):
                ct, rt = j & 1, j >> 1
                a(f"v_mfma_f32_32x32x16_bf16 {vr(16*j,16)}, {vr(WF + (ks%2)*8 + 4*ct, 4)}, {vr(hreg(ks, rt), 4)}, {vr(16*j,16)}")
                if j == 3 and ks + NP < 28: todo.append(lambda p, k=ks + NP: hload(k, p))
                if j < nref and todo: todo.pop(0)(paced)
        if E: wread(0)
        for ks in range(E):
            kstep(ks, True, 0)
            while todo: todo.pop(0)(True)
        wread(E)
        a("s_setprio 0")
        a("s_barrier")
        self.dpoint("attend")
        self.stamp(5)
        for ks in range(E, 36):
            if ks == o["opoll"]:
                while todo: todo.pop(0)(False)
                self.stamp(6)
                a("s_add_u32 s63, s63, 1024")
                self.poll(SWS, "s63", 246, 249, 1, 92)
                self.stamp(7)
                assert ks >= 36 - NP
                for k2 in range(28, 36): hload(k2)
            kstep(ks, False, 0 if ks < E + o["hold"] else 4)
        self.stamp(8)
        a("v_add_u32 v249, s58, v245")
        for j in (1, 2, 3):
            a(f"s_xor_b32 s46, s{W4}, {j}\ns_mul_i32 s46, s46, {GW}\nv_add_u32 v{249+j}, s46, v245")
        for j in (1, 2, 3):
            for i in range(4): a(f"ds_write_b128 v249, {vr(16*j + 4*i, 4)} offset:{(j-1)*4096 + 1024*i}")
        a("s_waitcnt lgkmcnt(0)\ns_barrier"); a.lg = []
        for j in range(3):
            for i in range(4): a.lds(f"ds_read_b128 {vr(HF + 16*j + 4*i, 4)}, v{250+j} offset:{4096*j + 1024*i}", ("rr", j))
        for j in range(3):
            a.need_lds(("rr", j))
            for i in range(16): a(f"v_add_f32 v{i}, v{i}, v{HF + 16*j + i}")
        for i in range(8): a(f"v_cvt_pk_bf16_f32 v{i}, v{2*i}, v{2*i+1}")
        a("s_nop 1")
        for p in (0, 4):
            a(f"v_permlane32_swap_b32 v{p}, v{p+2}\nv_permlane32_swap_b32 v{p+1}, v{p+3}")
        a("s_nop 1")
        for p in (0, 1):
            a(f"buffer_store_dwordx4 {vr(4*p,4)}, v248, {sr(SOUT,4)}, s94 offen offset:{32*p}")
        self.stamp(9)
        self.dspin()
        self.dump_stamps(16)
        a("s_endpgm")

    def build(self):
        a = self.a
        self.prologue()
        self.a_p0()
        a(f"s_cmp_eq_u32 s{SP}, 7\ns_cbranch_scc1 L_AS")
        a.reset(); self.a_p1_F()
        a.label("L_att0")
        self.attention()
        a.label("L_AS")
        a.reset(); self.a_p1_S()
        a("s_branch L_att0")
        a.label("L_B")
        a.reset(); self.b_prologue()
        a(f"s_cmp_eq_u32 s{SP}, 7\ns_cbranch_scc1 L_BS")
        sv = list(a.vm)
        self.b_p1_F(); self.b_gemm2()
        a.label("L_BS")
        a.reset(); a.vm = sv; self.b_p1_S()
        a.label("L_end")
        return self.finish()

    def finish(self):
        lines = fix_hazards(self.a.lines)
        head = open("cdna_kernels/" + NAME + ".s.ref").read().split("; Override launch")[0]
        s = head + f"; @launch grid=(256,1,1) block=(512,1,1) lds=163840\n"
        s += f""".amdgcn_target "amdgcn-amd-amdhsa--gfx950"
.text
.globl {NAME}_kernel
.p2align 8
.type {NAME}_kernel,@function
{NAME}_kernel:
""" + "\n".join(lines) + f"""
    s_endpgm
.section .rodata,"a"
.p2align 6
.amdhsa_kernel {NAME}_kernel
  .amdhsa_next_free_vgpr 256
  .amdhsa_next_free_sgpr 102
  .amdhsa_accum_offset 256
  .amdhsa_group_segment_fixed_size 0
  .amdhsa_kernarg_size 96
  .amdhsa_user_sgpr_count 2
  .amdhsa_user_sgpr_kernarg_segment_ptr 1
  .amdhsa_system_sgpr_workgroup_id_x 1
.end_amdhsa_kernel
"""
        return s

def fix_hazards(lines, verbose=True):
    out = []
    for ln in lines:
        if parse(ln) is not None:
            pr = check_hazards(out[-30:] + [ln])
            pr = [p for p in pr if p.endswith("-> [" + parse(ln).text + "]")]
            tail = check_hazards(out[-30:])
            pr = [p for p in pr if p not in tail]
            if pr:
                k = max(int(re.search(r"need (\d+)", p).group(1)) - int(re.search(r"have (\d+)", p).group(1)) for p in pr)
                if verbose: print("; auto nop", k, pr[0], file=sys.stderr)
                out.append(f"    s_nop {k-1}")
        out.append(ln)
    return out

if __name__ == "__main__":
    kw = {}
    outp = "cdna_kernels/" + NAME + ".s"
    for arg in sys.argv[1:]:
        k, v = arg.split("=")
        if k == "out": outp = v; continue
        try: v = eval(v)
        except Exception: pass
        kw[k] = v
    open(outp, "w").write(Gen(**kw).build())
```
